```python
import torch

def _softmax(x, axis=-1):
    return torch.softmax(x, dim=axis)

def _gelu(x):
    return torch.nn.functional.gelu(x, approximate='tanh')

def _silu(x):
    return torch.nn.functional.silu(x)

def _sigmoid(x):
    return torch.sigmoid(x)

def _layernorm(x, axis=-1, eps=1e-05):
    m = x.mean(dim=axis, keepdim=True)
    v = x.var(dim=axis, keepdim=True, unbiased=False)
    return (x - m) / torch.sqrt(v + eps)

def _scatter_add(tgt, idx, src, axis=0):
    return tgt.clone().index_add_(axis, idx, src)

def _segment_sum(src, seg, n):
    out = torch.zeros((n,) + src.shape[1:], dtype=src.dtype)
    return out.index_add_(0, seg, src)

def _pad(x, pw):
    flat = tuple((v for pair in reversed(pw) for v in pair))
    return torch.nn.functional.pad(x, flat)
kernel_name = 'gather_scatter__tensor_product_equiv_mace__graph'

def setup_inputs():

    _w = lambda a: (lambda t: t.to(torch.bfloat16) if t.is_floating_point() else t)(torch.as_tensor(a))
    N, deg = (50000, 16)
    Lmax, C, De = (1, 64, 4)
    M = (Lmax + 1) ** 2
    E = N * deg
    src = (lambda lo, hi, *s: torch.randint(lo, hi, s))(0, N, E).to(torch.int64)
    dst = (lambda lo, hi, *s: torch.randint(lo, hi, s))(0, N, E).to(torch.int64)
    r = (lambda *s: torch.randn(*s, dtype=torch.bfloat16) * 0.05)(E, 3).to(float)
    r = r / (torch.linalg.norm(r, dim=-1, keepdim=True).to(float) + 1e-06)
    rx, ry, rz = (r[:, 0].clone(), r[:, 1].clone(), r[:, 2].clone())
    x2, y2, z2 = (rx * rx, ry * ry, rz * rz)
    sh_list = [torch.ones_like(rx), rx, ry, rz, rx * ry, ry * rz, 2.0 * z2 - x2 - y2, rx * rz, x2 - y2, ry * (3.0 * x2 - y2), rx * ry * rz, ry * (4.0 * z2 - x2 - y2), rz * (2.0 * z2 - 3.0 * x2 - 3.0 * y2), rx * (4.0 * z2 - x2 - y2), rz * (x2 - y2), rx * (x2 - 3.0 * y2)]
    sh16 = torch.stack(sh_list, dim=-1).to(float)
    pad = max(0, M - 16)
    sh_full = torch.cat([sh16, torch.zeros((E, pad), dtype=float)], dim=-1)[:, :M]
    cg = ((lambda *s: torch.randn(*s, dtype=torch.bfloat16) * 0.05)(M, M, M) * (1.0 / float(M))).to(float)
    return {'x': _w(((lambda *s: torch.randn(*s, dtype=torch.bfloat16) * 0.05)(N, M, C) * 0.3).to(float)), 'src': _w(src), 'dst': _w(dst), 'sh': _w(sh_full.to(float)), 'edge_attr': _w(((lambda *s: torch.randn(*s, dtype=torch.bfloat16) * 0.05)(E, De) * 0.3).to(float)), 'cg': _w(cg), 'w_r': _w(((lambda *s: torch.randn(*s, dtype=torch.bfloat16) * 0.05)(De, C) * (1.0 / float(De) ** 0.5)).to(float)), 'w_out': _w(((lambda *s: torch.randn(*s, dtype=torch.bfloat16) * 0.05)(C, C) * (1.0 / float(C) ** 0.5)).to(float))}

def reference(x, src, dst, sh, edge_attr, cg, w_r, w_out):
    N = x.shape[0]
    M = x.shape[1]
    C = x.shape[2]
    h = x[src]
    tp = torch.einsum('uvw,euc,ev->ewc', cg, h, sh)
    rw = edge_attr @ w_r
    msg = tp * rw[:, None, :]
    msg2 = msg.reshape(-1, M * C)
    agg = _segment_sum(msg2, dst, N).reshape(N, M, C)
    out = torch.einsum('nmc,cd->nmd', agg, w_out)
    return out
```

```python
N=50000; E=800000; B=782
WS_CNT=0x0; WS_CUR=0x1000; WS_BASE=0x2000; WS_NOFF=0x4000
WS_BSRC=0x100000; WS_BF=0x500000; WS_SSRC=0x1200000; WS_SF=0x1600000; WS_AGG=0x2400000
WS_SIZE=268435456
out=[]
def e(s): out.append("    "+s)
def lab(s): out.append(s+":")
def srd(d, lo, size):
    e(f"s_mov_b32 s{d}, s{lo}"); e(f"s_and_b32 s{d+1}, s{lo+1}, 0xffff"); e(f"s_mov_b32 s{d+2}, {size:#x}"); e(f"s_mov_b32 s{d+3}, 0x00020000")
def kstart(name):
    out.append(f".globl {name}\n.p2align 8\n.type {name},@function\n{name}:")
def scan64(v):
    for sh in (1,2,4,8):
        e("s_nop 1"); e(f"v_add_u32_dpp v{v}, v{v}, v{v} row_shr:{sh} row_mask:0xf bank_mask:0xf bound_ctrl:0")
    e("s_nop 1"); e(f"v_add_u32_dpp v{v}, v{v}, v{v} row_bcast:15 row_mask:0xa bank_mask:0xf")
    e("s_nop 1"); e(f"v_add_u32_dpp v{v}, v{v}, v{v} row_bcast:31 row_mask:0xc bank_mask:0xf")
    e("s_nop 1")
kds=[]
def kd(name, vgpr, sgpr=96):
    kds.append(f""".amdhsa_kernel {name}
  .amdhsa_next_free_vgpr {vgpr}
  .amdhsa_next_free_sgpr {sgpr}
  .amdhsa_accum_offset {(vgpr+3)//4*4}
  .amdhsa_group_segment_fixed_size 0
  .amdhsa_kernarg_size 88
  .amdhsa_user_sgpr_count 2
  .amdhsa_user_sgpr_kernarg_segment_ptr 1
  .amdhsa_system_sgpr_workgroup_id_x 1
.end_amdhsa_kernel""")

kstart("k0z_kernel")
e("s_cmp_ge_u32 s2, 1"); e("s_cbranch_scc1 k0_end")
e("s_load_dwordx2 s[4:5], s[0:1], 80"); e("s_waitcnt lgkmcnt(0)")
srd(8,4,0x2000)
e("v_lshlrev_b32 v1, 5, v0")
for i in range(4): e(f"v_mov_b32 v{4+i}, 0")
e("buffer_store_dwordx4 v[4:7], v1, s[8:11], 0 offen")
e("buffer_store_dwordx4 v[4:7], v1, s[8:11], 0 offen offset:16")
lab("k0_end"); e("s_endpgm"); kd("k0z_kernel",8)

kstart("k1h_kernel")
e("s_cmp_ge_u32 s2, 400"); e("s_cbranch_scc1 k1_end")
e("s_load_dwordx2 s[4:5], s[0:1], 16"); e("s_load_dwordx2 s[6:7], s[0:1], 80"); e("s_waitcnt lgkmcnt(0)")
srd(8,4,E*4); srd(12,6,0x2000)
e("v_lshlrev_b32 v1, 4, v0"); e("v_mov_b32 v2, 0"); e("v_mov_b32 v3, 0"); e("v_mov_b32 v4, 0"); e("v_mov_b32 v5, 0")
e("ds_write_b128 v1, v[2:5]")
e("s_mul_i32 s3, s2, 8000")
e("v_lshlrev_b32 v6, 5, v0"); e("v_add_u32 v6, s3, v6")
e("v_cmp_gt_u32 vcc, 250, v0"); e("s_waitcnt lgkmcnt(0)"); e("s_barrier")
e("s_and_saveexec_b64 s[16:17], vcc")
e("buffer_load_dwordx4 v[8:11], v6, s[8:11], 0 offen"); e("buffer_load_dwordx4 v[12:15], v6, s[8:11], 0 offen offset:16")
e("v_mov_b32 v7, 1"); e("s_waitcnt vmcnt(0)")
for i in range(8):
    e(f"v_lshrrev_b32 v{8+i}, 6, v{8+i}"); e(f"v_lshlrev_b32 v{8+i}, 2, v{8+i}")
for i in range(8): e(f"ds_add_u32 v{8+i}, v7")
e("s_mov_b64 exec, s[16:17]"); e("s_waitcnt lgkmcnt(0)"); e("s_barrier")
e("v_lshlrev_b32 v1, 2, v0")
for j in range(4):
    e(f"ds_read_b32 v{2+j}, v1 offset:{j*1024}")
e("s_waitcnt lgkmcnt(0)")
for j in range(4):
    e(f"buffer_atomic_add v{2+j}, v1, s[12:15], 0 offen offset:{j*1024}")
lab("k1_end"); e("s_endpgm"); kd("k1h_kernel",16)

kstart("k2s_kernel")
e("s_cmp_ge_u32 s2, 400"); e("s_cbranch_scc1 k2_end")
e("s_load_dwordx4 s[4:7], s[0:1], 8")
e("s_load_dwordx4 s[20:23], s[0:1], 24")
e("s_load_dwordx2 s[24:25], s[0:1], 80"); e("s_waitcnt lgkmcnt(0)")
srd(8,4,E*4); srd(12,6,E*4); srd(28,20,E*8); srd(32,22,E*8); srd(36,24,WS_SIZE)
e("v_lshlrev_b32 v1, 4, v0")
for i in range(4): e(f"v_mov_b32 v{2+i}, 0")
e("ds_write_b128 v1, v[2:5]")
e("buffer_load_dwordx4 v[2:5], v1, s[36:39], 0 offen")
e("s_mul_i32 s3, s2, 8000")
e("v_lshlrev_b32 v6, 5, v0"); e("v_add_u32 v6, s3, v6")
e("v_lshlrev_b32 v7, 1, v6")
e("v_cmp_gt_u32 vcc, 250, v0"); e("s_and_saveexec_b64 s[16:17], vcc")
e("s_cbranch_execz k2_noload")
e("buffer_load_dwordx4 v[8:11], v6, s[12:15], 0 offen"); e("buffer_load_dwordx4 v[12:15], v6, s[12:15], 0 offen offset:16")
e("buffer_load_dwordx4 v[16:19], v6, s[8:11], 0 offen"); e("buffer_load_dwordx4 v[20:23], v6, s[8:11], 0 offen offset:16")
for i in range(4): e(f"buffer_load_dwordx4 v[{24+4*i}:{27+4*i}], v7, s[28:31], 0 offen offset:{16*i}")
for i in range(4): e(f"buffer_load_dwordx4 v[{40+4*i}:{43+4*i}], v7, s[32:35], 0 offen offset:{16*i}")
lab("k2_noload")
e("s_mov_b64 exec, s[16:17]"); e("s_waitcnt vmcnt(0)")
e("v_add_u32 v56, v2, v3"); e("v_add_u32 v57, v56, v4"); e("v_add_u32 v58, v57, v5")
e("v_mov_b32 v59, v58"); scan64(59)
e("v_lshrrev_b32 v60, 6, v0"); e("v_lshlrev_b32 v60, 2, v60")
e("v_and_b32 v61, 63, v0"); e("v_cmp_eq_u32 vcc, 63, v61"); e("s_and_saveexec_b64 s[16:17], vcc")
e("ds_write_b32 v60, v59 offset:8192"); e("s_mov_b64 exec, s[16:17]")
e("s_waitcnt lgkmcnt(0)"); e("s_barrier")
e("v_mov_b32 v62, 0"); e("ds_read_b128 v[64:67], v62 offset:8192"); e("s_waitcnt lgkmcnt(0)")
e("v_sub_u32 v59, v59, v58")
e("v_cmp_le_u32 vcc, 64, v0"); e("s_nop 1");  e("v_cndmask_b32 v64, 0, v64, vcc"); e("v_add_u32 v59, v59, v64")
e("v_cmp_le_u32 vcc, 128, v0"); e("s_nop 1"); e("v_cndmask_b32 v65, 0, v65, vcc"); e("v_add_u32 v59, v59, v65")
e("v_cmp_le_u32 vcc, 192, v0"); e("s_nop 1"); e("v_cndmask_b32 v66, 0, v66, vcc"); e("v_add_u32 v59, v59, v66")
e("v_add_u32 v56, v56, v59"); e("v_add_u32 v57, v57, v59"); e("v_add_u32 v2, v2, v59")
e("v_mov_b32 v64, v59"); e("v_mov_b32 v65, v2"); e("v_mov_b32 v66, v56"); e("v_mov_b32 v67, v57")
e("s_cmp_lg_u32 s2, 0"); e("s_cbranch_scc1 k2_nobase")
e(f"s_mov_b32 s42, {WS_BASE}"); e("buffer_store_dwordx4 v[64:67], v1, s[36:39], s42 offen")
lab("k2_nobase")
e("v_cmp_gt_u32 vcc, 250, v0"); e("s_and_saveexec_b64 s[16:17], vcc")
e("v_mov_b32 v62, 1")
for i in range(8):
    e(f"v_lshrrev_b32 v{68+i}, 6, v{8+i}"); e(f"v_lshlrev_b32 v{68+i}, 2, v{68+i}")
for i in range(8): e(f"ds_add_u32 v{68+i}, v62")
e("s_mov_b64 exec, s[16:17]"); e("s_waitcnt lgkmcnt(0)"); e("s_barrier")
e("ds_read_b128 v[76:79], v1"); e("s_waitcnt lgkmcnt(0)")
e("v_lshlrev_b32 v61, 4, v0")
e(f"s_mov_b32 s42, {WS_CUR}")
for j in range(4): e(f"buffer_atomic_add v{76+j}, v61, s[36:39], s42 offen offset:{4*j} sc0")
e("s_waitcnt vmcnt(0)")
for j in range(4): e(f"v_add_u32 v{76+j}, v{76+j}, v{64+j}")
e("ds_write_b128 v1, v[76:79] offset:4096"); e("s_waitcnt lgkmcnt(0)"); e("s_barrier")
e("v_cmp_gt_u32 vcc, 250, v0"); e("s_and_saveexec_b64 s[16:17], vcc"); e("s_cbranch_execz k2_end")
for i in range(8): e(f"ds_add_rtn_u32 v{68+i}, v{68+i}, v62 offset:4096")
e("s_waitcnt lgkmcnt(0)")
for i in range(8):
    e(f"v_and_b32 v{8+i}, 63, v{8+i}"); e(f"v_lshl_or_b32 v{8+i}, v{8+i}, 16, v{16+i}")
    e(f"v_lshlrev_b32 v{68+i}, 2, v{68+i}")
    e(f"buffer_store_dword v{8+i}, v{68+i}, s[36:39], 0 offen offset:0") if False else None
e(f"s_mov_b32 s40, {WS_BSRC}"); e(f"s_mov_b32 s41, {WS_BF}")
for i in range(8):
    e(f"buffer_store_dword v{8+i}, v{68+i}, s[36:39], s40 offen")
for i in range(8):
    e(f"v_lshlrev_b32 v{68+i}, 2, v{68+i}")
    e(f"v_mov_b32 v{16+2*0}, v{24+2*i}") if False else None
for i in range(8):
    e(f"v_mov_b32 v80, v{24+2*i}"); e(f"v_mov_b32 v81, v{25+2*i}"); e(f"v_mov_b32 v82, v{40+2*i}"); e(f"v_mov_b32 v83, v{41+2*i}")
    e(f"buffer_store_dwordx4 v[80:83], v{68+i}, s[36:39], s41 offen"); e("s_nop 1")
lab("k2_end"); e("s_endpgm"); kd("k2s_kernel",84)

kstart("k3b_kernel")
e(f"s_cmp_ge_u32 s2, {B}"); e("s_cbranch_scc1 kb_end")
e("s_load_dwordx2 s[4:5], s[0:1], 80"); e("s_waitcnt lgkmcnt(0)")
srd(8,4,WS_SIZE)
e("s_lshl_b32 s3, s2, 2"); e(f"s_add_u32 s3, s3, {WS_BASE}"); e("s_add_u32 s6, s4, s3"); e("s_addc_u32 s7, s5, 0")
e("s_load_dwordx2 s[12:13], s[6:7], 0")
e("v_lshlrev_b32 v1, 2, v0"); e("v_mov_b32 v2, 0"); e("ds_write_b32 v1, v2")
e("v_mov_b32 v3, 1"); e("s_waitcnt lgkmcnt(0)"); e("s_barrier")
e("v_add_u32 v4, s12, v0")
lab("kb_l1")
e("v_cmp_gt_u32 vcc, s13, v4"); e("s_and_saveexec_b64 s[16:17], vcc"); e("s_cbranch_execz kb_l1e")
e("v_lshlrev_b32 v5, 2, v4"); e(f"buffer_load_dword v6, v5, s[8:11], 0 offen offset:0" if False else f"s_mov_b32 s20, {WS_BSRC}")
e("buffer_load_dword v6, v5, s[8:11], s20 offen"); e("s_waitcnt vmcnt(0)")
e("v_lshrrev_b32 v6, 16, v6"); e("v_lshlrev_b32 v6, 2, v6"); e("ds_add_u32 v6, v3")
e("v_add_u32 v4, 256, v4"); e("s_branch kb_l1")
lab("kb_l1e"); e("s_mov_b64 exec, -1"); e("s_waitcnt lgkmcnt(0)"); e("s_barrier")
e("v_cmp_gt_u32 vcc, 64, v0"); e("s_and_saveexec_b64 s[16:17], vcc"); e("s_cbranch_execz kb_sk")
e("ds_read_b32 v7, v1"); e("s_waitcnt lgkmcnt(0)"); e("v_mov_b32 v8, v7"); scan64(8)
e("v_sub_u32 v8, v8, v7"); e("v_add_u32 v8, s12, v8"); e("ds_write_b32 v1, v8 offset:1024")
e("s_lshl_b32 s21, s2, 6"); e("v_add_u32 v9, s21, v0"); e(f"v_cmp_ge_u32 vcc, {N}, v9"); e("s_and_b64 exec, exec, vcc")
e("s_cbranch_execz kb_sk")
e("v_lshlrev_b32 v9, 2, v9"); e(f"buffer_store_dword v8, v9, s[8:11], 0 offen offset:0" if False else f"s_mov_b32 s20, {WS_NOFF}")
e("buffer_store_dword v8, v9, s[8:11], s20 offen")
lab("kb_sk"); e("s_mov_b64 exec, -1"); e("s_waitcnt lgkmcnt(0)"); e("s_barrier")
e("v_add_u32 v4, s12, v0")
e(f"s_mov_b32 s20, {WS_BSRC}"); e(f"s_mov_b32 s21, {WS_BF}"); e(f"s_mov_b32 s22, {WS_SSRC}"); e(f"s_mov_b32 s23, {WS_SF}")
lab("kb_l2")
e("v_cmp_gt_u32 vcc, s13, v4"); e("s_and_saveexec_b64 s[16:17], vcc"); e("s_cbranch_execz kb_end")
e("v_lshlrev_b32 v5, 2, v4"); e("v_lshlrev_b32 v10, 4, v4")
e("buffer_load_dword v6, v5, s[8:11], s20 offen"); e("buffer_load_dwordx4 v[12:15], v10, s[8:11], s21 offen"); e("s_waitcnt vmcnt(1)")
e("v_lshrrev_b32 v7, 16, v6"); e("v_lshlrev_b32 v7, 2, v7"); e("ds_add_rtn_u32 v7, v7, v3 offset:1024")
e("v_and_b32 v6, 0xffff, v6"); e("s_waitcnt lgkmcnt(0)")
e("v_lshlrev_b32 v8, 4, v7"); e("v_lshlrev_b32 v7, 2, v7")
e("buffer_store_dword v6, v7, s[8:11], s22 offen"); e("s_waitcnt vmcnt(1)")
e("buffer_store_dwordx4 v[12:15], v8, s[8:11], s23 offen")
e("v_add_u32 v4, 256, v4"); e("s_branch kb_l2")
lab("kb_end"); e("s_endpgm"); kd("k3b_kernel",16)

D=4
kstart("k4m_kernel")
e("v_lshrrev_b32 v1, 6, v0"); e("s_nop 0"); e("v_readfirstlane_b32 s3, v1")
e("s_lshl_b32 s2, s2, 2"); e("s_nop 0"); e("s_add_u32 s2, s2, s3")
e(f"s_cmp_ge_u32 s2, {N}"); e("s_cbranch_scc1 km_end")
e("s_load_dwordx2 s[4:5], s[0:1], 0"); e("s_load_dwordx4 s[20:23], s[0:1], 40"); e("s_load_dwordx2 s[6:7], s[0:1], 80"); e("s_waitcnt lgkmcnt(0)")
srd(8,4,N*512); srd(12,6,WS_SIZE); srd(24,20,128); srd(28,22,512)
e("s_lshl_b32 s3, s2, 2"); e(f"s_add_u32 s3, s3, {WS_NOFF}"); e("s_add_u32 s16, s6, s3"); e("s_addc_u32 s17, s7, 0")
e("s_load_dwordx2 s[18:19], s[16:17], 0")
e("v_and_b32 v0, 63, v0")
e("v_lshlrev_b32 v1, 3, v0")
e("v_and_b32 v2, 15, v0"); e("v_lshlrev_b32 v2, 3, v2")
for d in range(4): e(f"buffer_load_dwordx2 v[{32+2*d}:{33+2*d}], v2, s[28:31], 0 offen offset:{128*d}")
e("s_waitcnt vmcnt(0)")
for d in range(4):
    for h in range(2):
        e(f"v_lshlrev_b32 v{16+4*d+2*h}, 16, v{32+2*d+h}"); e(f"v_and_b32 v{17+4*d+2*h}, 0xffff0000, v{32+2*d+h}")
for i in range(16): e(f"v_mov_b32 v{32+i}, 0")
e("s_waitcnt lgkmcnt(0)")
e(f"s_mov_b32 s32, {WS_SSRC}"); e(f"s_mov_b32 s33, {WS_SF}")
e("s_mov_b32 s34, s18")
lab("km_batch")
e("s_cmp_ge_u32 s34, s19"); e("s_cbranch_scc1 km_done")
e("s_sub_u32 s35, s19, s34"); e("s_min_u32 s35, s35, 64")
e("v_add_u32 v3, s34, v0"); e("v_lshlrev_b32 v4, 2, v3"); e("v_lshlrev_b32 v5, 4, v3")
for i in (8,12,13,14,15): e(f"v_mov_b32 v{i}, 0")
e("v_cmp_gt_u32 vcc, s35, v0"); e("s_and_saveexec_b64 s[36:37], vcc")
e("buffer_load_dword v8, v4, s[12:15], s32 offen"); e("buffer_load_dwordx4 v[12:15], v5, s[12:15], s33 offen" )
e("s_mov_b64 exec, s[36:37]"); e("s_waitcnt vmcnt(0)")
e("v_lshlrev_b32 v8, 9, v8"); e("v_mov_b32 v9, 0x7f000000"); e("v_cndmask_b32 v8, v9, v8, vcc")
e("s_nop 1")
for i in range(D):
    e(f"v_readlane_b32 s{40+i}, v8, {i}")
e("s_nop 4")
for i in range(D): e(f"buffer_load_dwordx2 v[{48+2*i}:{49+2*i}], v1, s[8:11], s{40+i} offen")
e("s_mov_b32 s38, 0")
lab("km_loop")
for i in range(D):
    e(f"s_add_u32 s39, s38, {i}")
    for q in range(4): e(f"v_readlane_b32 s{44+q}, v{12+q}, s39")
    e(f"s_add_u32 s39, s38, {i+D}"); e("s_and_b32 s39, s39, 63"); e(f"v_readlane_b32 s{40+i}, v8, s39")
    for q in range(4):
        e(f"s_lshl_b32 s{48+2*q}, s{44+q}, 16"); e(f"s_and_b32 s{49+2*q}, s{44+q}, 0xffff0000")
    e(f"s_waitcnt vmcnt({D-1})")
    b=48+2*i
    e(f"v_lshlrev_b32 v56, 16, v{b}"); e(f"v_and_b32 v57, 0xffff0000, v{b}"); e(f"v_lshlrev_b32 v58, 16, v{b+1}"); e(f"v_and_b32 v59, 0xffff0000, v{b+1}")
    e(f"s_add_u32 s39, s38, {i+D}"); e("s_cmp_ge_u32 s39, s35"); e(f"s_cselect_b32 s{40+i}, 0x7f000000, s{40+i}")
    e(f"buffer_load_dwordx2 v[{b}:{b+1}], v1, s[8:11], s{40+i} offen")
    for j in range(4):
        e(f"v_mul_f32 v{60+j}, s52, v{16+j}")
    for d in range(1,4):
        for j in range(4): e(f"v_fmac_f32 v{60+j}, s{52+d}, v{16+4*d+j}")
    for j in range(4): e(f"v_mul_f32 v{60+j}, v{60+j}, v{56+j}")
    for v in range(4):
        for j in range(4): e(f"v_fmac_f32 v{32+4*v+j}, s{48+v}, v{60+j}")
e(f"s_add_u32 s38, s38, {D}"); e("s_cmp_lt_u32 s38, s35"); e("s_cbranch_scc1 km_loop")
e("s_waitcnt vmcnt(0)")
e("s_add_u32 s34, s34, 64"); e("s_branch km_batch")
lab("km_done")
e("v_lshrrev_b32 v3, 4, v0"); e("v_lshlrev_b32 v3, 5, v3")
e("buffer_load_dwordx4 v[48:51], v3, s[24:27], 0 offen"); e("buffer_load_dwordx4 v[52:55], v3, s[24:27], 0 offen offset:16"); e("s_waitcnt vmcnt(0)")
for v in range(4):
    for h in range(2):
        e(f"v_lshlrev_b32 v{16+4*v+2*h}, 16, v{48+2*v+h}"); e(f"v_and_b32 v{17+4*v+2*h}, 0xffff0000, v{48+2*v+h}")
for w in range(4):
    for j in range(4):
        e(f"v_mul_f32 v{48+4*w+j}, v{16+w}, v{32+j}")
        for v in range(1,4): e(f"v_fmac_f32 v{48+4*w+j}, v{16+4*v+w}, v{32+4*v+j}")
e("v_xor_b32 v4, 16, v0"); e("v_lshlrev_b32 v4, 2, v4"); e("v_xor_b32 v5, 32, v0"); e("v_lshlrev_b32 v5, 2, v5")
for a in (4,5):
    for r in range(16): e(f"ds_bpermute_b32 v{16+r}, v{a}, v{48+r}")
    e("s_waitcnt lgkmcnt(0)")
    for r in range(16): e(f"v_add_f32 v{48+r}, v{48+r}, v{16+r}")
e("v_lshrrev_b32 v3, 4, v0")
for j in range(4): e(f"v_mov_b32 v{16+j}, v{48+j}")
for w in range(1,4):
    e(f"v_cmp_eq_u32 vcc, {w}, v3"); e("s_nop 1")
    for j in range(4): e(f"v_cndmask_b32 v{16+j}, v{16+j}, v{48+4*w+j}, vcc")
e("v_cvt_pk_bf16_f32 v20, v16, v17"); e("v_cvt_pk_bf16_f32 v21, v18, v19")
e("s_lshl_b32 s39, s2, 9"); e(f"s_add_u32 s39, s39, {WS_AGG}")
e("buffer_store_dwordx2 v[20:21], v1, s[12:15], s39 offen")
lab("km_end"); e("s_endpgm"); kd("k4m_kernel",64)

kstart("k5g_kernel")
NT=N*4//16
e("v_lshrrev_b32 v1, 6, v0"); e("s_nop 0"); e("v_readfirstlane_b32 s3, v1")
e("s_lshl_b32 s2, s2, 2"); e("s_nop 0"); e("s_add_u32 s2, s2, s3")
e(f"s_cmp_ge_u32 s2, {NT}"); e("s_cbranch_scc1 kg_end")
e("s_load_dwordx2 s[4:5], s[0:1], 56"); e("s_load_dwordx2 s[6:7], s[0:1], 64"); e("s_load_dwordx2 s[20:21], s[0:1], 80"); e("s_waitcnt lgkmcnt(0)")
srd(8,4,8192); srd(12,6,N*512); srd(16,20,WS_SIZE)
e("v_and_b32 v0, 63, v0"); e("v_and_b32 v1, 15, v0"); e("v_lshrrev_b32 v2, 4, v0")
e("v_lshlrev_b32 v3, 10, v2"); e("v_lshl_add_u32 v3, v1, 1, v3")
for t in range(4):
    for kk in range(2):
        e(f"s_mov_b32 s24, {kk*4096}")
        for i in range(8):
            e(f"buffer_load_ushort v{64+i}, v3, s[8:11], s24 offen offset:{i*128+t*32}")
        e("s_waitcnt vmcnt(0)")
        for i in range(4): e(f"v_lshl_or_b32 v{16+(t*2+kk)*4+i}, v{65+2*i}, 16, v{64+2*i}")
e("v_lshlrev_b32 v4, 7, v1"); e("v_lshl_add_u32 v4, v2, 4, v4")
e("v_lshlrev_b32 v5, 7, v1"); e("v_lshl_add_u32 v5, v2, 3, v5")
lab("kg_loop")
e("s_lshl_b32 s22, s2, 11"); e(f"s_add_u32 s23, s22, {WS_AGG}")
e("buffer_load_dwordx4 v[8:11], v4, s[16:19], s23 offen"); e("buffer_load_dwordx4 v[12:15], v4, s[16:19], s23 offen offset:64"); e("s_waitcnt vmcnt(0)")
for t in range(4):
    e(f"v_mfma_f32_16x16x32_bf16 v[{64+4*t}:{67+4*t}], v[{16+t*8}:{19+t*8}], v[8:11], 0")
for t in range(4):
    e(f"v_mfma_f32_16x16x32_bf16 v[{64+4*t}:{67+4*t}], v[{20+t*8}:{23+t*8}], v[12:15], v[{64+4*t}:{67+4*t}]")
e("s_nop 7"); e("s_nop 3")
for t in range(4):
    e(f"v_cvt_pk_bf16_f32 v{80+2*t}, v{64+4*t}, v{65+4*t}"); e(f"v_cvt_pk_bf16_f32 v{81+2*t}, v{66+4*t}, v{67+4*t}")
    e(f"buffer_store_dwordx2 v[{80+2*t}:{81+2*t}], v5, s[12:15], s22 offen offset:{32*t}")
e("s_add_u32 s2, s2, 2048"); e(f"s_cmp_lt_u32 s2, {NT}"); e("s_cbranch_scc1 kg_loop")
lab("kg_end"); e("s_endpgm"); kd("k5g_kernel",88)

hdr=open('gather_scatter__tensor_product_equiv_mace__graph.s.ref').read().split('\n')
hdr=[l for l in hdr if l.startswith(';') and '@launch' not in l]
L=["; @launch kernel=k0z_kernel grid=(1,1,1) block=(256,1,1) lds=0",
"; @launch kernel=k1h_kernel grid=(400,1,1) block=(256,1,1) lds=4096",
"; @launch kernel=k2s_kernel grid=(400,1,1) block=(256,1,1) lds=8448",
f"; @launch kernel=k3b_kernel grid=({B},1,1) block=(256,1,1) lds=2048",
"; @launch kernel=k4m_kernel grid=(12500,1,1) block=(256,1,1) lds=0",
"; @launch kernel=k5g_kernel grid=(512,1,1) block=(256,1,1) lds=0"]
txt="\n".join(hdr+L)+'\n.amdgcn_target "amdgcn-amd-amdhsa--gfx950"\n.text\n'+"\n".join(out)+'\n.section .rodata,"a"\n'+"\n".join(".p2align 6\n"+k for k in kds)+"\n"
open('gather_scatter__tensor_product_equiv_mace__graph.s','w').write(txt)
```

```python
N=50000; E=800000; B=782
WS_CNT=0x0; WS_CUR=0x1000; WS_BASE=0x2000; WS_NOFF=0x4000
WS_BSRC=0x100000; WS_BF=0x500000; WS_SSRC=0x1200000; WS_SF=0x1600000; WS_AGG=0x2400000
WS_SIZE=268435456
out=[]
def e(s): out.append("    "+s)
def lab(s): out.append(s+":")
def srd(d, lo, size):
    e(f"s_mov_b32 s{d}, s{lo}"); e(f"s_and_b32 s{d+1}, s{lo+1}, 0xffff"); e(f"s_mov_b32 s{d+2}, {size:#x}"); e(f"s_mov_b32 s{d+3}, 0x00020000")
def kstart(name):
    out.append(f".globl {name}\n.p2align 8\n.type {name},@function\n{name}:")
def scan64(v):
    for sh in (1,2,4,8):
        e("s_nop 1"); e(f"v_add_u32_dpp v{v}, v{v}, v{v} row_shr:{sh} row_mask:0xf bank_mask:0xf bound_ctrl:0")
    e("s_nop 1"); e(f"v_add_u32_dpp v{v}, v{v}, v{v} row_bcast:15 row_mask:0xa bank_mask:0xf")
    e("s_nop 1"); e(f"v_add_u32_dpp v{v}, v{v}, v{v} row_bcast:31 row_mask:0xc bank_mask:0xf")
    e("s_nop 1")
kds=[]
def kd(name, vgpr, sgpr=96):
    kds.append(f""".amdhsa_kernel {name}
  .amdhsa_next_free_vgpr {vgpr}
  .amdhsa_next_free_sgpr {sgpr}
  .amdhsa_accum_offset {(vgpr+3)//4*4}
  .amdhsa_group_segment_fixed_size 0
  .amdhsa_kernarg_size 88
  .amdhsa_user_sgpr_count 2
  .amdhsa_user_sgpr_kernarg_segment_ptr 1
  .amdhsa_system_sgpr_workgroup_id_x 1
.end_amdhsa_kernel""")

kstart("k0z_kernel")
e("s_cmp_ge_u32 s2, 1"); e("s_cbranch_scc1 k0_end")
e("s_load_dwordx2 s[4:5], s[0:1], 80"); e("s_waitcnt lgkmcnt(0)")
srd(8,4,0x2000)
e("v_lshlrev_b32 v1, 5, v0")
for i in range(4): e(f"v_mov_b32 v{4+i}, 0")
e("buffer_store_dwordx4 v[4:7], v1, s[8:11], 0 offen")
e("buffer_store_dwordx4 v[4:7], v1, s[8:11], 0 offen offset:16")
lab("k0_end"); e("s_endpgm"); kd("k0z_kernel",8)

kstart("k1h_kernel")
e("s_cmp_ge_u32 s2, 400"); e("s_cbranch_scc1 k1_end")
e("s_load_dwordx2 s[4:5], s[0:1], 16"); e("s_load_dwordx2 s[6:7], s[0:1], 80"); e("s_waitcnt lgkmcnt(0)")
srd(8,4,E*4); srd(12,6,0x2000)
e("v_lshlrev_b32 v1, 4, v0"); e("v_mov_b32 v2, 0"); e("v_mov_b32 v3, 0"); e("v_mov_b32 v4, 0"); e("v_mov_b32 v5, 0")
e("ds_write_b128 v1, v[2:5]")
e("s_mul_i32 s3, s2, 8000")
e("v_lshlrev_b32 v6, 5, v0"); e("v_add_u32 v6, s3, v6")
e("v_cmp_gt_u32 vcc, 250, v0"); e("s_waitcnt lgkmcnt(0)"); e("s_barrier")
e("s_and_saveexec_b64 s[16:17], vcc")
e("buffer_load_dwordx4 v[8:11], v6, s[8:11], 0 offen"); e("buffer_load_dwordx4 v[12:15], v6, s[8:11], 0 offen offset:16")
e("v_mov_b32 v7, 1"); e("s_waitcnt vmcnt(0)")
for i in range(8):
    e(f"v_lshrrev_b32 v{8+i}, 6, v{8+i}"); e(f"v_lshlrev_b32 v{8+i}, 2, v{8+i}")
for i in range(8): e(f"ds_add_u32 v{8+i}, v7")
e("s_mov_b64 exec, s[16:17]"); e("s_waitcnt lgkmcnt(0)"); e("s_barrier")
e("v_lshlrev_b32 v1, 2, v0")
for j in range(4):
    e(f"ds_read_b32 v{2+j}, v1 offset:{j*1024}")
e("s_waitcnt lgkmcnt(0)")
for j in range(4):
    e(f"buffer_atomic_add v{2+j}, v1, s[12:15], 0 offen offset:{j*1024}")
lab("k1_end"); e("s_endpgm"); kd("k1h_kernel",16)

kstart("k2s_kernel")
e("s_cmp_ge_u32 s2, 400"); e("s_cbranch_scc1 k2_end")
e("s_load_dwordx4 s[4:7], s[0:1], 8")
e("s_load_dwordx4 s[20:23], s[0:1], 24")
e("s_load_dwordx2 s[24:25], s[0:1], 80"); e("s_waitcnt lgkmcnt(0)")
srd(8,4,E*4); srd(12,6,E*4); srd(28,20,E*8); srd(32,22,E*8); srd(36,24,WS_SIZE)
e("v_lshlrev_b32 v1, 4, v0")
for i in range(4): e(f"v_mov_b32 v{2+i}, 0")
e("ds_write_b128 v1, v[2:5]")
e("buffer_load_dwordx4 v[2:5], v1, s[36:39], 0 offen")
e("s_mul_i32 s3, s2, 8000")
e("v_lshlrev_b32 v6, 5, v0"); e("v_add_u32 v6, s3, v6")
e("v_lshlrev_b32 v7, 1, v6")
e("v_cmp_gt_u32 vcc, 250, v0"); e("s_and_saveexec_b64 s[16:17], vcc")
e("s_cbranch_execz k2_noload")
e("buffer_load_dwordx4 v[8:11], v6, s[12:15], 0 offen"); e("buffer_load_dwordx4 v[12:15], v6, s[12:15], 0 offen offset:16")
e("buffer_load_dwordx4 v[16:19], v6, s[8:11], 0 offen"); e("buffer_load_dwordx4 v[20:23], v6, s[8:11], 0 offen offset:16")
for i in range(4): e(f"buffer_load_dwordx4 v[{24+4*i}:{27+4*i}], v7, s[28:31], 0 offen offset:{16*i}")
for i in range(4): e(f"buffer_load_dwordx4 v[{40+4*i}:{43+4*i}], v7, s[32:35], 0 offen offset:{16*i}")
lab("k2_noload")
e("s_mov_b64 exec, s[16:17]"); e("s_waitcnt vmcnt(0)")
e("v_add_u32 v56, v2, v3"); e("v_add_u32 v57, v56, v4"); e("v_add_u32 v58, v57, v5")
e("v_mov_b32 v59, v58"); scan64(59)
e("v_lshrrev_b32 v60, 6, v0"); e("v_lshlrev_b32 v60, 2, v60")
e("v_and_b32 v61, 63, v0"); e("v_cmp_eq_u32 vcc, 63, v61"); e("s_and_saveexec_b64 s[16:17], vcc")
e("ds_write_b32 v60, v59 offset:8192"); e("s_mov_b64 exec, s[16:17]")
e("s_waitcnt lgkmcnt(0)"); e("s_barrier")
e("v_mov_b32 v62, 0"); e("ds_read_b128 v[64:67], v62 offset:8192"); e("s_waitcnt lgkmcnt(0)")
e("v_sub_u32 v59, v59, v58")
e("v_cmp_le_u32 vcc, 64, v0"); e("s_nop 1");  e("v_cndmask_b32 v64, 0, v64, vcc"); e("v_add_u32 v59, v59, v64")
e("v_cmp_le_u32 vcc, 128, v0"); e("s_nop 1"); e("v_cndmask_b32 v65, 0, v65, vcc"); e("v_add_u32 v59, v59, v65")
e("v_cmp_le_u32 vcc, 192, v0"); e("s_nop 1"); e("v_cndmask_b32 v66, 0, v66, vcc"); e("v_add_u32 v59, v59, v66")
e("v_add_u32 v56, v56, v59"); e("v_add_u32 v57, v57, v59"); e("v_add_u32 v2, v2, v59")
e("v_mov_b32 v64, v59"); e("v_mov_b32 v65, v2"); e("v_mov_b32 v66, v56"); e("v_mov_b32 v67, v57")
e("s_cmp_lg_u32 s2, 0"); e("s_cbranch_scc1 k2_nobase")
e(f"s_mov_b32 s42, {WS_BASE}"); e("buffer_store_dwordx4 v[64:67], v1, s[36:39], s42 offen")
lab("k2_nobase")
e("v_cmp_gt_u32 vcc, 250, v0"); e("s_and_saveexec_b64 s[16:17], vcc")
e("v_mov_b32 v62, 1")
for i in range(8):
    e(f"v_lshrrev_b32 v{68+i}, 6, v{8+i}"); e(f"v_lshlrev_b32 v{68+i}, 2, v{68+i}")
for i in range(8): e(f"ds_add_u32 v{68+i}, v62")
e("s_mov_b64 exec, s[16:17]"); e("s_waitcnt lgkmcnt(0)"); e("s_barrier")
e("ds_read_b128 v[76:79], v1"); e("s_waitcnt lgkmcnt(0)")
e("v_lshlrev_b32 v61, 4, v0")
e(f"s_mov_b32 s42, {WS_CUR}")
for j in range(4): e(f"buffer_atomic_add v{76+j}, v61, s[36:39], s42 offen offset:{4*j} sc0")
e("s_waitcnt vmcnt(0)")
for j in range(4): e(f"v_add_u32 v{76+j}, v{76+j}, v{64+j}")
e("ds_write_b128 v1, v[76:79] offset:4096"); e("s_waitcnt lgkmcnt(0)"); e("s_barrier")
e("v_cmp_gt_u32 vcc, 250, v0"); e("s_and_saveexec_b64 s[16:17], vcc"); e("s_cbranch_execz k2_end")
for i in range(8): e(f"ds_add_rtn_u32 v{68+i}, v{68+i}, v62 offset:4096")
e("s_waitcnt lgkmcnt(0)")
for i in range(8):
    e(f"v_and_b32 v{8+i}, 63, v{8+i}"); e(f"v_lshl_or_b32 v{8+i}, v{8+i}, 16, v{16+i}")
    e(f"v_lshlrev_b32 v{68+i}, 2, v{68+i}")
    e(f"buffer_store_dword v{8+i}, v{68+i}, s[36:39], 0 offen offset:0") if False else None
e(f"s_mov_b32 s40, {WS_BSRC}"); e(f"s_mov_b32 s41, {WS_BF}")
for i in range(8):
    e(f"buffer_store_dword v{8+i}, v{68+i}, s[36:39], s40 offen")
for i in range(8):
    e(f"v_lshlrev_b32 v{68+i}, 2, v{68+i}")
    e(f"v_mov_b32 v{16+2*0}, v{24+2*i}") if False else None
for i in range(8):
    e(f"v_mov_b32 v80, v{24+2*i}"); e(f"v_mov_b32 v81, v{25+2*i}"); e(f"v_mov_b32 v82, v{40+2*i}"); e(f"v_mov_b32 v83, v{41+2*i}")
    e(f"buffer_store_dwordx4 v[80:83], v{68+i}, s[36:39], s41 offen"); e("s_nop 1")
lab("k2_end"); e("s_endpgm"); kd("k2s_kernel",84)

kstart("k3b_kernel")
e(f"s_cmp_ge_u32 s2, {B}"); e("s_cbranch_scc1 kb_end")
e("s_load_dwordx2 s[4:5], s[0:1], 80"); e("s_waitcnt lgkmcnt(0)")
srd(8,4,WS_SIZE)
e("s_lshl_b32 s3, s2, 2"); e(f"s_add_u32 s3, s3, {WS_BASE}"); e("s_add_u32 s6, s4, s3"); e("s_addc_u32 s7, s5, 0")
e("s_load_dwordx2 s[12:13], s[6:7], 0")
e("v_lshlrev_b32 v1, 2, v0"); e("v_mov_b32 v2, 0"); e("ds_write_b32 v1, v2")
e("v_mov_b32 v3, 1"); e("s_waitcnt lgkmcnt(0)"); e("s_barrier")
e("v_add_u32 v4, s12, v0")
lab("kb_l1")
e("v_cmp_gt_u32 vcc, s13, v4"); e("s_and_saveexec_b64 s[16:17], vcc"); e("s_cbranch_execz kb_l1e")
e("v_lshlrev_b32 v5, 2, v4"); e(f"buffer_load_dword v6, v5, s[8:11], 0 offen offset:0" if False else f"s_mov_b32 s20, {WS_BSRC}")
e("buffer_load_dword v6, v5, s[8:11], s20 offen"); e("s_waitcnt vmcnt(0)")
e("v_lshrrev_b32 v6, 16, v6"); e("v_lshlrev_b32 v6, 2, v6"); e("ds_add_u32 v6, v3")
e("v_add_u32 v4, 256, v4"); e("s_branch kb_l1")
lab("kb_l1e"); e("s_mov_b64 exec, -1"); e("s_waitcnt lgkmcnt(0)"); e("s_barrier")
e("v_cmp_gt_u32 vcc, 64, v0"); e("s_and_saveexec_b64 s[16:17], vcc"); e("s_cbranch_execz kb_sk")
e("ds_read_b32 v7, v1"); e("s_waitcnt lgkmcnt(0)"); e("v_mov_b32 v8, v7"); scan64(8)
e("v_sub_u32 v8, v8, v7"); e("v_add_u32 v8, s12, v8"); e("ds_write_b32 v1, v8 offset:1024")
e("s_lshl_b32 s21, s2, 6"); e("v_add_u32 v9, s21, v0"); e(f"v_cmp_ge_u32 vcc, {N}, v9"); e("s_and_b64 exec, exec, vcc")
e("s_cbranch_execz kb_sk")
e("v_lshlrev_b32 v9, 2, v9"); e(f"buffer_store_dword v8, v9, s[8:11], 0 offen offset:0" if False else f"s_mov_b32 s20, {WS_NOFF}")
e("buffer_store_dword v8, v9, s[8:11], s20 offen")
lab("kb_sk"); e("s_mov_b64 exec, -1"); e("s_waitcnt lgkmcnt(0)"); e("s_barrier")
e("v_add_u32 v4, s12, v0")
e(f"s_mov_b32 s20, {WS_BSRC}"); e(f"s_mov_b32 s21, {WS_BF}"); e(f"s_mov_b32 s22, {WS_SSRC}"); e(f"s_mov_b32 s23, {WS_SF}")
lab("kb_l2")
e("v_cmp_gt_u32 vcc, s13, v4"); e("s_and_saveexec_b64 s[16:17], vcc"); e("s_cbranch_execz kb_end")
e("v_lshlrev_b32 v5, 2, v4"); e("v_lshlrev_b32 v10, 4, v4")
e("buffer_load_dword v6, v5, s[8:11], s20 offen"); e("buffer_load_dwordx4 v[12:15], v10, s[8:11], s21 offen"); e("s_waitcnt vmcnt(1)")
e("v_lshrrev_b32 v7, 16, v6"); e("v_lshlrev_b32 v7, 2, v7"); e("ds_add_rtn_u32 v7, v7, v3 offset:1024")
e("v_and_b32 v6, 0xffff, v6"); e("s_waitcnt lgkmcnt(0)")
e("v_lshlrev_b32 v8, 4, v7"); e("v_lshlrev_b32 v7, 2, v7")
e("buffer_store_dword v6, v7, s[8:11], s22 offen"); e("s_waitcnt vmcnt(1)")
e("buffer_store_dwordx4 v[12:15], v8, s[8:11], s23 offen")
e("v_add_u32 v4, 256, v4"); e("s_branch kb_l2")
lab("kb_end"); e("s_endpgm"); kd("k3b_kernel",16)

D=8
def pk(op,d,s0,s1,s2=None,sel0=None):
    ops=f"v[{d}:{d+1}], {s0}, v[{s1}:{s1+1}]"+(f", v[{s2}:{s2+1}]" if s2 is not None else "")
    n=3 if s2 is not None else 2
    if sel0 is None: e(f"{op} {ops}")
    else:
        lo=[sel0]+[0]*(n-1); hi=[sel0]+[1]*(n-1)
        e(f"{op} {ops} op_sel:[{','.join(map(str,lo))}] op_sel_hi:[{','.join(map(str,hi))}]")
kstart("k4m_kernel")
e("v_lshrrev_b32 v1, 6, v0"); e("s_nop 0"); e("v_readfirstlane_b32 s3, v1")
e("s_lshl_b32 s2, s2, 2"); e("s_nop 0"); e("s_add_u32 s2, s2, s3")
e(f"s_cmp_ge_u32 s2, {N}"); e("s_cbranch_scc1 km_end")
e("s_load_dwordx2 s[4:5], s[0:1], 0"); e("s_load_dwordx4 s[20:23], s[0:1], 40"); e("s_load_dwordx2 s[6:7], s[0:1], 80"); e("s_waitcnt lgkmcnt(0)")
srd(8,4,N*512); srd(12,6,WS_SIZE); srd(24,20,128); srd(28,22,512)
e("s_lshl_b32 s3, s2, 2"); e(f"s_add_u32 s3, s3, {WS_NOFF}"); e("s_add_u32 s16, s6, s3"); e("s_addc_u32 s17, s7, 0")
e("s_load_dwordx2 s[18:19], s[16:17], 0")
e("v_and_b32 v0, 63, v0")
e("v_lshlrev_b32 v1, 2, v0")
e("v_and_b32 v2, 31, v0"); e("v_lshlrev_b32 v2, 2, v2")
for d in range(4): e(f"buffer_load_dword v{32+d}, v2, s[28:31], 0 offen offset:{128*d}")
e("v_lshrrev_b32 v3, 5, v0"); e("v_lshlrev_b32 v3, 5, v3")
for q in range(4): e(f"buffer_load_dwordx4 v[{64+4*q}:{67+4*q}], v3, s[24:27], 0 offen offset:{(q&1)*16+(q>>1)*64}")
e("s_waitcnt vmcnt(4)")
for d in range(4):
    e(f"v_lshlrev_b32 v{16+2*d}, 16, v{32+d}"); e(f"v_and_b32 v{17+2*d}, 0xffff0000, v{32+d}")
for i in range(16): e(f"v_mov_b32 v{32+i}, 0")
e("s_waitcnt lgkmcnt(0)")
e(f"s_mov_b32 s32, {WS_SSRC}"); e(f"s_mov_b32 s33, {WS_SF}")
e("s_mov_b32 s34, s18")
lab("km_batch")
e("s_cmp_ge_u32 s34, s19"); e("s_cbranch_scc1 km_done")
e("s_sub_u32 s35, s19, s34"); e("s_min_u32 s35, s35, 64")
e("v_add_u32 v3, s34, v0"); e("v_lshlrev_b32 v4, 2, v3"); e("v_lshlrev_b32 v5, 4, v3")
for i in (8,12,13,14,15): e(f"v_mov_b32 v{i}, 0")
e("v_cmp_gt_u32 vcc, s35, v0"); e("s_and_saveexec_b64 s[36:37], vcc")
e("buffer_load_dword v8, v4, s[12:15], s32 offen"); e("buffer_load_dwordx4 v[12:15], v5, s[12:15], s33 offen" )
e("s_mov_b64 exec, s[36:37]"); e("s_waitcnt vmcnt(0)")
e("v_lshlrev_b32 v8, 9, v8"); e("v_mov_b32 v9, 0x7f000000"); e("v_cndmask_b32 v8, v9, v8, vcc")
e("s_nop 1")
for i in range(D): e(f"v_readlane_b32 s{40+i}, v8, {i}")
e("s_nop 4")
for i in range(D):
    e(f"buffer_load_dword v{48+2*i}, v1, s[8:11], s{40+i} offen"); e(f"buffer_load_dword v{49+2*i}, v1, s[8:11], s{40+i} offen offset:256")
e("s_mov_b32 s38, 0")
lab("km_loop")
for i in range(D):
    e(f"s_add_u32 s39, s38, {i}")
    for q in range(4): e(f"v_readlane_b32 s{48+q}, v{12+q}, s39")
    e(f"s_add_u32 s39, s38, {i+D}"); e("s_and_b32 s39, s39, 63"); e(f"v_readlane_b32 s{40+i}, v8, s39")
    for q in range(4):
        e(f"s_lshl_b32 s{56+2*q}, s{48+q}, 16"); e(f"s_and_b32 s{57+2*q}, s{48+q}, 0xffff0000")
    e(f"s_waitcnt vmcnt({2*(D-1)})")
    b=48+2*i
    e(f"v_lshlrev_b32 v24, 16, v{b}"); e(f"v_and_b32 v25, 0xffff0000, v{b}"); e(f"v_lshlrev_b32 v26, 16, v{b+1}"); e(f"v_and_b32 v27, 0xffff0000, v{b+1}")
    e(f"s_add_u32 s39, s38, {i+D}"); e("s_cmp_ge_u32 s39, s35"); e(f"s_cselect_b32 s{40+i}, 0x7f000000, s{40+i}")
    e(f"buffer_load_dword v{b}, v1, s[8:11], s{40+i} offen"); e(f"buffer_load_dword v{b+1}, v1, s[8:11], s{40+i} offen offset:256")
    pk("v_pk_mul_f32",28,"s[60:61]",16,None,0)
    pk("v_pk_fma_f32",28,"s[60:61]",18,28,1)
    pk("v_pk_fma_f32",28,"s[62:63]",20,28,0)
    pk("v_pk_fma_f32",28,"s[62:63]",22,28,1)
    pk("v_pk_mul_f32",24,"v[28:29]",24)
    pk("v_pk_mul_f32",26,"v[28:29]",26)
    for v in range(4):
        for ui in range(2):
            pk("v_pk_fma_f32",32+8*ui+2*v,f"s[{56+(v&2)}:{57+(v&2)}]",24+2*ui,32+8*ui+2*v,v&1)
    if i<D-1:
        e(f"s_add_u32 s39, s38, {i+1}"); e("s_cmp_ge_u32 s39, s35"); e("s_cbranch_scc1 km_bend")
e(f"s_add_u32 s38, s38, {D}"); e("s_cmp_lt_u32 s38, s35"); e("s_cbranch_scc1 km_loop")
lab("km_bend")
e("s_waitcnt vmcnt(0)")
e("s_add_u32 s34, s34, 64"); e("s_branch km_batch")
lab("km_done")
e("s_waitcnt vmcnt(0)")
first=True
for ui in range(2):
    for v in range(4):
        for wp in range(2):
            src=64+8*ui+2*v+wp
            e(f"v_lshlrev_b32 v{48+2*wp}, 16, v{src}"); e(f"v_and_b32 v{49+2*wp}, 0xffff0000, v{src}")
        for w in range(4):
            t=32+8*ui+2*v
            if first: pk("v_pk_mul_f32",16+2*w,f"v[{48+(w&2)}:{49+(w&2)}]",t,None,w&1)
            else: pk("v_pk_fma_f32",16+2*w,f"v[{48+(w&2)}:{49+(w&2)}]",t,16+2*w,w&1)
        first=False
for r in range(8): e(f"v_mov_b32 v{24+r}, v{16+r}")
e("s_nop 1")
for r in range(8): e(f"v_permlane32_swap_b32 v{16+r}, v{24+r}")
for r in range(8): e(f"v_add_f32 v{16+r}, v{16+r}, v{24+r}")
e("v_cmp_le_u32 vcc, 32, v0"); e("s_nop 1")
for r in range(4): e(f"v_cndmask_b32 v{16+r}, v{16+r}, v{20+r}, vcc")
e("v_cvt_pk_bf16_f32 v20, v16, v17"); e("v_cvt_pk_bf16_f32 v21, v18, v19")
e("v_lshrrev_b32 v3, 5, v0"); e("v_lshl_add_u32 v3, v3, 8, v2")
e("s_lshl_b32 s39, s2, 9"); e(f"s_add_u32 s39, s39, {WS_AGG}")
e("buffer_store_dword v20, v3, s[12:15], s39 offen"); e("buffer_store_dword v21, v3, s[12:15], s39 offen offset:128")
lab("km_end"); e("s_endpgm"); kd("k4m_kernel",80)

kstart("k5g_kernel")
NT=N*4//16
e("v_lshrrev_b32 v1, 6, v0"); e("s_nop 0"); e("v_readfirstlane_b32 s3, v1")
e("s_lshl_b32 s2, s2, 2"); e("s_nop 0"); e("s_add_u32 s2, s2, s3")
e(f"s_cmp_ge_u32 s2, {NT}"); e("s_cbranch_scc1 kg_end")
e("s_load_dwordx2 s[4:5], s[0:1], 56"); e("s_load_dwordx2 s[6:7], s[0:1], 64"); e("s_load_dwordx2 s[20:21], s[0:1], 80"); e("s_waitcnt lgkmcnt(0)")
srd(8,4,8192); srd(12,6,N*512); srd(16,20,WS_SIZE)
e("v_and_b32 v0, 63, v0"); e("v_and_b32 v1, 15, v0"); e("v_lshrrev_b32 v2, 4, v0")
e("v_lshlrev_b32 v3, 10, v2"); e("v_lshl_add_u32 v3, v1, 1, v3")
for t in range(4):
    for kk in range(2):
        e(f"s_mov_b32 s24, {kk*4096}")
        for i in range(8):
            e(f"buffer_load_ushort v{64+i}, v3, s[8:11], s24 offen offset:{i*128+t*32}")
        e("s_waitcnt vmcnt(0)")
        for i in range(4): e(f"v_lshl_or_b32 v{16+(t*2+kk)*4+i}, v{65+2*i}, 16, v{64+2*i}")
e("v_lshlrev_b32 v4, 7, v1"); e("v_lshl_add_u32 v4, v2, 4, v4")
e("v_lshlrev_b32 v5, 7, v1"); e("v_lshl_add_u32 v5, v2, 3, v5")
lab("kg_loop")
e("s_lshl_b32 s22, s2, 11"); e(f"s_add_u32 s23, s22, {WS_AGG}")
e("buffer_load_dwordx4 v[8:11], v4, s[16:19], s23 offen"); e("buffer_load_dwordx4 v[12:15], v4, s[16:19], s23 offen offset:64"); e("s_waitcnt vmcnt(0)")
for t in range(4):
    e(f"v_mfma_f32_16x16x32_bf16 v[{64+4*t}:{67+4*t}], v[{16+t*8}:{19+t*8}], v[8:11], 0")
for t in range(4):
    e(f"v_mfma_f32_16x16x32_bf16 v[{64+4*t}:{67+4*t}], v[{20+t*8}:{23+t*8}], v[12:15], v[{64+4*t}:{67+4*t}]")
e("s_nop 7"); e("s_nop 3")
for t in range(4):
    e(f"v_cvt_pk_bf16_f32 v{80+2*t}, v{64+4*t}, v{65+4*t}"); e(f"v_cvt_pk_bf16_f32 v{81+2*t}, v{66+4*t}, v{67+4*t}")
    e(f"buffer_store_dwordx2 v[{80+2*t}:{81+2*t}], v5, s[12:15], s22 offen offset:{32*t}")
e("s_add_u32 s2, s2, 2048"); e(f"s_cmp_lt_u32 s2, {NT}"); e("s_cbranch_scc1 kg_loop")
lab("kg_end"); e("s_endpgm"); kd("k5g_kernel",88)

hdr=open('gather_scatter__tensor_product_equiv_mace__graph.s.ref').read().split('\n')
hdr=[l for l in hdr if l.startswith(';') and '@launch' not in l]
L=["; @launch kernel=k0z_kernel grid=(1,1,1) block=(256,1,1) lds=0",
"; @launch kernel=k1h_kernel grid=(400,1,1) block=(256,1,1) lds=4096",
"; @launch kernel=k2s_kernel grid=(400,1,1) block=(256,1,1) lds=8448",
f"; @launch kernel=k3b_kernel grid=({B},1,1) block=(256,1,1) lds=2048",
"; @launch kernel=k4m_kernel grid=(12500,1,1) block=(256,1,1) lds=0",
"; @launch kernel=k5g_kernel grid=(512,1,1) block=(256,1,1) lds=0"]
txt="\n".join(hdr+L)+'\n.amdgcn_target "amdgcn-amd-amdhsa--gfx950"\n.text\n'+"\n".join(out)+'\n.section .rodata,"a"\n'+"\n".join(".p2align 6\n"+k for k in kds)+"\n"
open('gather_scatter__tensor_product_equiv_mace__graph.s','w').write(txt)
```

```python
N=50000; E=800000; B=782
WS_CNT=0x0; WS_CUR=0x1000; WS_BASE=0x2000; WS_NOFF=0x4000
WS_BSRC=0x100000; WS_BF=0x500000; WS_SSRC=0x1200000; WS_SF=0x1600000; WS_AGG=0x2400000
WS_SIZE=268435456
out=[]
def e(s): out.append("    "+s)
def lab(s): out.append(s+":")
def srd(d, lo, size):
    e(f"s_mov_b32 s{d}, s{lo}"); e(f"s_and_b32 s{d+1}, s{lo+1}, 0xffff"); e(f"s_mov_b32 s{d+2}, {size:#x}"); e(f"s_mov_b32 s{d+3}, 0x00020000")
def kstart(name):
    out.append(f".globl {name}\n.p2align 8\n.type {name},@function\n{name}:")
def scan64(v):
    for sh in (1,2,4,8):
        e("s_nop 1"); e(f"v_add_u32_dpp v{v}, v{v}, v{v} row_shr:{sh} row_mask:0xf bank_mask:0xf bound_ctrl:0")
    e("s_nop 1"); e(f"v_add_u32_dpp v{v}, v{v}, v{v} row_bcast:15 row_mask:0xa bank_mask:0xf")
    e("s_nop 1"); e(f"v_add_u32_dpp v{v}, v{v}, v{v} row_bcast:31 row_mask:0xc bank_mask:0xf")
    e("s_nop 1")
kds=[]
def kd(name, vgpr, sgpr=96):
    kds.append(f""".amdhsa_kernel {name}
  .amdhsa_next_free_vgpr {vgpr}
  .amdhsa_next_free_sgpr {sgpr}
  .amdhsa_accum_offset {(vgpr+3)//4*4}
  .amdhsa_group_segment_fixed_size 0
  .amdhsa_kernarg_size 88
  .amdhsa_user_sgpr_count 2
  .amdhsa_user_sgpr_kernarg_segment_ptr 1
  .amdhsa_system_sgpr_workgroup_id_x 1
.end_amdhsa_kernel""")

kstart("k0z_kernel")
e("s_cmp_ge_u32 s2, 1"); e("s_cbranch_scc1 k0_end")
e("s_load_dwordx2 s[4:5], s[0:1], 80"); e("s_waitcnt lgkmcnt(0)")
srd(8,4,0x2000)
e("v_lshlrev_b32 v1, 5, v0")
for i in range(4): e(f"v_mov_b32 v{4+i}, 0")
e("buffer_store_dwordx4 v[4:7], v1, s[8:11], 0 offen")
e("buffer_store_dwordx4 v[4:7], v1, s[8:11], 0 offen offset:16")
lab("k0_end"); e("s_endpgm"); kd("k0z_kernel",8)

B=196
def blockscan(v, t, wsumoff):
    e(f"v_mov_b32 v{t}, v{v}"); scan64(t)
    e(f"v_lshrrev_b32 v{t+1}, 6, v0"); e(f"v_lshlrev_b32 v{t+1}, 2, v{t+1}")
    e(f"v_and_b32 v{t+2}, 63, v0"); e(f"v_cmp_eq_u32 vcc, 63, v{t+2}"); e("s_and_saveexec_b64 s[16:17], vcc")
    e(f"ds_write_b32 v{t+1}, v{t} offset:{wsumoff}"); e("s_mov_b64 exec, s[16:17]")
    e("s_waitcnt lgkmcnt(0)"); e("s_barrier")
    e(f"v_mov_b32 v{t+1}, 0")
    for k in range(3): e(f"ds_read_b32 v{t+2+k}, v{t+1} offset:{wsumoff+4*k}")
    e("s_waitcnt lgkmcnt(0)")
    e(f"v_sub_u32 v{v}, v{t}, v{v}")
    for k in range(3):
        e(f"v_cmp_le_u32 vcc, {64*(k+1)}, v0"); e("s_nop 1"); e(f"v_cndmask_b32 v{t+2+k}, 0, v{t+2+k}, vcc"); e(f"v_add_u32 v{v}, v{v}, v{t+2+k}")
    e("s_barrier")

kstart("k1h_kernel")
e("s_cmp_ge_u32 s2, 400"); e("s_cbranch_scc1 k1_end")
e("s_load_dwordx2 s[4:5], s[0:1], 16"); e("s_load_dwordx2 s[6:7], s[0:1], 80"); e("s_waitcnt lgkmcnt(0)")
srd(8,4,E*4); srd(12,6,0x2000)
e("v_lshlrev_b32 v1, 2, v0"); e("v_mov_b32 v2, 0"); e("ds_write_b32 v1, v2")
e("s_mul_i32 s3, s2, 8000")
e("v_lshlrev_b32 v6, 5, v0"); e("v_add_u32 v6, s3, v6")
e("v_cmp_gt_u32 vcc, 250, v0"); e("s_waitcnt lgkmcnt(0)"); e("s_barrier")
e("s_and_saveexec_b64 s[16:17], vcc")
e("buffer_load_dwordx4 v[8:11], v6, s[8:11], 0 offen"); e("buffer_load_dwordx4 v[12:15], v6, s[8:11], 0 offen offset:16")
e("v_mov_b32 v7, 1"); e("s_waitcnt vmcnt(0)")
for i in range(8):
    e(f"v_lshrrev_b32 v{8+i}, 8, v{8+i}"); e(f"v_lshlrev_b32 v{8+i}, 2, v{8+i}")
for i in range(8): e(f"ds_add_u32 v{8+i}, v7")
e("s_mov_b64 exec, s[16:17]"); e("s_waitcnt lgkmcnt(0)"); e("s_barrier")
e("ds_read_b32 v2, v1"); e("s_waitcnt lgkmcnt(0)")
e("buffer_atomic_add v2, v1, s[12:15], 0 offen")
lab("k1_end"); e("s_endpgm"); kd("k1h_kernel",16)

L_H=0; L_CUR=1024; L_DL=2048; L_WS=3072; L_IDX=4096; L_F=12288
kstart("k2s_kernel")
e("s_cmp_ge_u32 s2, 400"); e("s_cbranch_scc1 k2_end")
e("s_load_dwordx4 s[4:7], s[0:1], 8"); e("s_load_dwordx4 s[20:23], s[0:1], 24"); e("s_load_dwordx2 s[24:25], s[0:1], 80"); e("s_waitcnt lgkmcnt(0)")
srd(8,4,E*4); srd(12,6,E*4); srd(28,20,E*8); srd(32,22,E*8); srd(36,24,WS_SIZE)
e("v_lshlrev_b32 v1, 2, v0"); e("v_mov_b32 v2, 0"); e(f"ds_write_b32 v1, v2 offset:{L_H}")
e("buffer_load_dword v56, v1, s[36:39], 0 offen")
e("s_mul_i32 s3, s2, 8000")
e("v_lshlrev_b32 v6, 5, v0"); e("v_add_u32 v6, s3, v6"); e("v_lshlrev_b32 v7, 1, v6")
e("v_cmp_gt_u32 vcc, 250, v0"); e("s_and_saveexec_b64 s[18:19], vcc")
e("buffer_load_dwordx4 v[8:11], v6, s[12:15], 0 offen"); e("buffer_load_dwordx4 v[12:15], v6, s[12:15], 0 offen offset:16")
e("buffer_load_dwordx4 v[16:19], v6, s[8:11], 0 offen"); e("buffer_load_dwordx4 v[20:23], v6, s[8:11], 0 offen offset:16")
for i in range(4): e(f"buffer_load_dwordx4 v[{24+4*i}:{27+4*i}], v7, s[28:31], 0 offen offset:{16*i}")
for i in range(4): e(f"buffer_load_dwordx4 v[{40+4*i}:{43+4*i}], v7, s[32:35], 0 offen offset:{16*i}")
e("s_mov_b64 exec, s[18:19]"); e("s_waitcnt vmcnt(0) lgkmcnt(0)"); e("s_barrier")
e("v_mov_b32 v57, v56"); blockscan(57,60,L_WS)
e("s_cmp_lg_u32 s2, 0"); e("s_cbranch_scc1 k2_nobase")
e(f"s_mov_b32 s42, {WS_BASE}"); e("buffer_store_dword v57, v1, s[36:39], s42 offen")
e("v_add_u32 v58, v57, v56"); e("v_cmp_eq_u32 vcc, 255, v0"); e("s_and_saveexec_b64 s[16:17], vcc")
e("buffer_store_dword v58, v1, s[36:39], s42 offen offset:4"); e("s_mov_b64 exec, s[16:17]")
lab("k2_nobase")
e("v_mov_b32 v79, 1")
e("s_mov_b64 exec, s[18:19]"); e("v_cmp_gt_u32 vcc, 250, v0"); e("s_and_saveexec_b64 s[16:17], vcc")
for i in range(8):
    e(f"v_lshrrev_b32 v{68+i}, 8, v{8+i}"); e(f"v_lshlrev_b32 v{68+i}, 2, v{68+i}")
for i in range(8): e(f"ds_add_u32 v{68+i}, v79 offset:{L_H}")
e("s_mov_b64 exec, s[16:17]"); e("s_waitcnt lgkmcnt(0)"); e("s_barrier")
e(f"ds_read_b32 v58, v1 offset:{L_H}"); e("s_waitcnt lgkmcnt(0)")
e("v_mov_b32 v59, v58"); e(f"s_mov_b32 s42, {WS_CUR}")
e("buffer_atomic_add v59, v1, s[36:39], s42 offen sc0")
blockscan(58,60,L_WS)
e("s_waitcnt vmcnt(0)")
e("v_add_u32 v59, v59, v57"); e("v_sub_u32 v59, v59, v58")
e(f"ds_write_b32 v1, v58 offset:{L_CUR}"); e(f"ds_write_b32 v1, v59 offset:{L_DL}"); e("s_waitcnt lgkmcnt(0)"); e("s_barrier")
e("v_cmp_gt_u32 vcc, 250, v0"); e("s_and_saveexec_b64 s[16:17], vcc")
for i in range(8): e(f"ds_add_rtn_u32 v{68+i}, v{68+i}, v79 offset:{L_CUR}")
e("s_waitcnt lgkmcnt(0)")
for i in range(8):
    e(f"v_lshlrev_b32 v{8+i}, 16, v{8+i}"); e(f"v_or_b32 v{8+i}, v{8+i}, v{16+i}")
    e(f"v_lshlrev_b32 v{76}, 2, v{68+i}"); e(f"ds_write_b32 v76, v{8+i} offset:{L_IDX}")
    e(f"v_lshlrev_b32 v{77}, 4, v{68+i}")
    e(f"ds_write_b64 v77, v[{24+2*i}:{25+2*i}] offset:{L_F}"); e(f"ds_write_b64 v77, v[{40+2*i}:{41+2*i}] offset:{L_F+8}")
e("s_mov_b64 exec, s[16:17]"); e("s_waitcnt lgkmcnt(0)"); e("s_barrier")
e(f"s_mov_b32 s40, {WS_BSRC}"); e(f"s_mov_b32 s41, {WS_BF}")
e("v_lshlrev_b32 v2, 4, v0")
for it in range(8):
    if it==7:
        e("v_cmp_gt_u32 vcc, 208, v0"); e("s_and_saveexec_b64 s[16:17], vcc"); e("s_cbranch_execz k2_end")
    e(f"ds_read_b32 v{8+it}, v1 offset:{L_IDX+1024*it}"); e(f"ds_read_b128 v[{24+4*it}:{27+4*it}], v2 offset:{L_F+4096*it}")
    e("s_waitcnt lgkmcnt(1)")
    e(f"v_lshrrev_b32 v60, 24, v{8+it}"); e("v_lshlrev_b32 v60, 2, v60"); e(f"ds_read_b32 v60, v60 offset:{L_DL}")
    e(f"v_and_b32 v{8+it}, 0xffffff, v{8+it}"); e("s_waitcnt lgkmcnt(0)")
    e(f"v_add3_u32 v60, v60, v0, {256*it}" if 256*it<=64 else f"v_add_u32 v60, {256*it}, v60")
    if 256*it>64: e("v_add_u32 v60, v60, v0")
    e("v_lshlrev_b32 v61, 4, v60"); e("v_lshlrev_b32 v60, 2, v60")
    e(f"buffer_store_dword v{8+it}, v60, s[36:39], s40 offen"); e(f"buffer_store_dwordx4 v[{24+4*it}:{27+4*it}], v61, s[36:39], s41 offen")
lab("k2_end"); e("s_endpgm"); kd("k2s_kernel",80)

kstart("k3b_kernel")
e(f"s_cmp_ge_u32 s2, {B}"); e("s_cbranch_scc1 kb_end")
e("s_load_dwordx2 s[4:5], s[0:1], 80"); e("s_waitcnt lgkmcnt(0)")
srd(8,4,WS_SIZE)
e("s_lshl_b32 s3, s2, 2"); e(f"s_add_u32 s3, s3, {WS_BASE}"); e("s_add_u32 s6, s4, s3"); e("s_addc_u32 s7, s5, 0")
e("s_load_dwordx2 s[12:13], s[6:7], 0")
e("v_lshlrev_b32 v1, 2, v0"); e("v_mov_b32 v2, 0"); e("ds_write_b32 v1, v2")
e("v_mov_b32 v3, 1"); e(f"s_mov_b32 s20, {WS_BSRC}"); e("s_waitcnt lgkmcnt(0)"); e("s_barrier")
e("v_add_u32 v4, s12, v0")
lab("kb_l1")
e("v_cmp_gt_u32 vcc, s13, v4"); e("s_and_saveexec_b64 s[16:17], vcc"); e("s_cbranch_execz kb_l1e")
e("v_lshlrev_b32 v5, 2, v4"); e("buffer_load_dword v6, v5, s[8:11], s20 offen"); e("s_waitcnt vmcnt(0)")
e("v_bfe_u32 v6, v6, 16, 8"); e("v_lshlrev_b32 v6, 2, v6"); e("ds_add_u32 v6, v3")
e("v_add_u32 v4, 256, v4"); e("s_branch kb_l1")
lab("kb_l1e"); e("s_mov_b64 exec, -1"); e("s_waitcnt lgkmcnt(0)"); e("s_barrier")
e("ds_read_b32 v8, v1"); e("s_waitcnt lgkmcnt(0)"); blockscan(8,16,2048)
e("v_add_u32 v8, s12, v8"); e("ds_write_b32 v1, v8 offset:1024")
e("s_lshl_b32 s21, s2, 8"); e("v_add_u32 v9, s21, v0"); e(f"v_cmp_ge_u32 vcc, {N}, v9"); e("s_and_saveexec_b64 s[16:17], vcc")
e("s_cbranch_execz kb_sk")
e("v_lshlrev_b32 v9, 2, v9"); e(f"s_mov_b32 s20, {WS_NOFF}"); e("buffer_store_dword v8, v9, s[8:11], s20 offen")
lab("kb_sk"); e("s_mov_b64 exec, -1"); e("s_waitcnt lgkmcnt(0)"); e("s_barrier")
e("v_add_u32 v4, s12, v0")
e(f"s_mov_b32 s20, {WS_BSRC}"); e(f"s_mov_b32 s21, {WS_BF}"); e(f"s_mov_b32 s22, {WS_SSRC}"); e(f"s_mov_b32 s23, {WS_SF}")
lab("kb_l2")
e("v_cmp_gt_u32 vcc, s13, v4"); e("s_and_saveexec_b64 s[16:17], vcc"); e("s_cbranch_execz kb_end")
e("v_lshlrev_b32 v5, 2, v4"); e("v_lshlrev_b32 v10, 4, v4")
e("buffer_load_dword v6, v5, s[8:11], s20 offen"); e("buffer_load_dwordx4 v[12:15], v10, s[8:11], s21 offen"); e("s_waitcnt vmcnt(1)")
e("v_bfe_u32 v7, v6, 16, 8"); e("v_lshlrev_b32 v7, 2, v7"); e("ds_add_rtn_u32 v7, v7, v3 offset:1024")
e("v_and_b32 v6, 0xffff, v6"); e("s_waitcnt lgkmcnt(0)")
e("v_lshlrev_b32 v8, 4, v7"); e("v_lshlrev_b32 v7, 2, v7")
e("buffer_store_dword v6, v7, s[8:11], s22 offen"); e("s_waitcnt vmcnt(1)")
e("buffer_store_dwordx4 v[12:15], v8, s[8:11], s23 offen")
e("v_add_u32 v4, 256, v4"); e("s_branch kb_l2")
lab("kb_end"); e("s_endpgm"); kd("k3b_kernel",24)

D=8
def pk(op,d,s0,s1,s2=None,sel0=None):
    ops=f"v[{d}:{d+1}], {s0}, v[{s1}:{s1+1}]"+(f", v[{s2}:{s2+1}]" if s2 is not None else "")
    n=3 if s2 is not None else 2
    if sel0 is None: e(f"{op} {ops}")
    else:
        lo=[sel0]+[0]*(n-1); hi=[sel0]+[1]*(n-1)
        e(f"{op} {ops} op_sel:[{','.join(map(str,lo))}] op_sel_hi:[{','.join(map(str,hi))}]")
kstart("k4m_kernel")
e("v_lshrrev_b32 v1, 6, v0"); e("s_nop 0"); e("v_readfirstlane_b32 s3, v1")
e("s_lshl_b32 s2, s2, 2"); e("s_nop 0"); e("s_add_u32 s2, s2, s3")
e(f"s_cmp_ge_u32 s2, {N}"); e("s_cbranch_scc1 km_end")
e("s_load_dwordx2 s[4:5], s[0:1], 0"); e("s_load_dwordx4 s[20:23], s[0:1], 40"); e("s_load_dwordx2 s[6:7], s[0:1], 80"); e("s_waitcnt lgkmcnt(0)")
srd(8,4,N*512); srd(12,6,WS_SIZE); srd(24,20,128); srd(28,22,512)
e("s_lshl_b32 s3, s2, 2"); e(f"s_add_u32 s3, s3, {WS_NOFF}"); e("s_add_u32 s16, s6, s3"); e("s_addc_u32 s17, s7, 0")
e("s_load_dwordx2 s[18:19], s[16:17], 0")
e("v_and_b32 v0, 63, v0")
e("v_lshlrev_b32 v1, 2, v0")
e("v_and_b32 v2, 31, v0"); e("v_lshlrev_b32 v2, 2, v2")
for d in range(4): e(f"buffer_load_dword v{32+d}, v2, s[28:31], 0 offen offset:{128*d}")
e("v_lshrrev_b32 v3, 5, v0"); e("v_lshlrev_b32 v3, 5, v3")
for q in range(4): e(f"buffer_load_dwordx4 v[{64+4*q}:{67+4*q}], v3, s[24:27], 0 offen offset:{(q&1)*16+(q>>1)*64}")
e("s_waitcnt vmcnt(4)")
for d in range(4):
    e(f"v_lshlrev_b32 v{16+2*d}, 16, v{32+d}"); e(f"v_and_b32 v{17+2*d}, 0xffff0000, v{32+d}")
for i in range(16): e(f"v_mov_b32 v{32+i}, 0")
e("s_waitcnt lgkmcnt(0)")
e(f"s_mov_b32 s32, {WS_SSRC}"); e(f"s_mov_b32 s33, {WS_SF}")
e("s_mov_b32 s34, s18")
lab("km_batch")
e("s_cmp_ge_u32 s34, s19"); e("s_cbranch_scc1 km_done")
e("s_sub_u32 s35, s19, s34"); e("s_min_u32 s35, s35, 64")
e("v_add_u32 v3, s34, v0"); e("v_lshlrev_b32 v4, 2, v3"); e("v_lshlrev_b32 v5, 4, v3")
for i in (8,12,13,14,15): e(f"v_mov_b32 v{i}, 0")
e("v_cmp_gt_u32 vcc, s35, v0"); e("s_and_saveexec_b64 s[36:37], vcc")
e("buffer_load_dword v8, v4, s[12:15], s32 offen"); e("buffer_load_dwordx4 v[12:15], v5, s[12:15], s33 offen" )
e("s_mov_b64 exec, s[36:37]"); e("s_waitcnt vmcnt(0)")
e("v_lshlrev_b32 v8, 9, v8"); e("v_mov_b32 v9, 0x7f000000"); e("v_cndmask_b32 v8, v9, v8, vcc")
e("s_nop 1")
for i in range(D): e(f"v_readlane_b32 s{40+i}, v8, {i}")
e("s_nop 4")
for i in range(D):
    e(f"buffer_load_dword v{48+2*i}, v1, s[8:11], s{40+i} offen"); e(f"buffer_load_dword v{49+2*i}, v1, s[8:11], s{40+i} offen offset:256")
e("s_mov_b32 s38, 0")
lab("km_loop")
for i in range(D):
    e(f"s_add_u32 s39, s38, {i}")
    for q in range(4): e(f"v_readlane_b32 s{48+q}, v{12+q}, s39")
    e(f"s_add_u32 s39, s38, {i+D}"); e("s_and_b32 s39, s39, 63"); e(f"v_readlane_b32 s{40+i}, v8, s39")
    for q in range(4):
        e(f"s_lshl_b32 s{56+2*q}, s{48+q}, 16"); e(f"s_and_b32 s{57+2*q}, s{48+q}, 0xffff0000")
    e(f"s_waitcnt vmcnt({2*(D-1)})")
    b=48+2*i
    e(f"v_lshlrev_b32 v24, 16, v{b}"); e(f"v_and_b32 v25, 0xffff0000, v{b}"); e(f"v_lshlrev_b32 v26, 16, v{b+1}"); e(f"v_and_b32 v27, 0xffff0000, v{b+1}")
    e(f"s_add_u32 s39, s38, {i+D}"); e("s_cmp_ge_u32 s39, s35"); e(f"s_cselect_b32 s{40+i}, 0x7f000000, s{40+i}")
    e(f"buffer_load_dword v{b}, v1, s[8:11], s{40+i} offen"); e(f"buffer_load_dword v{b+1}, v1, s[8:11], s{40+i} offen offset:256")
    pk("v_pk_mul_f32",28,"s[60:61]",16,None,0)
    pk("v_pk_fma_f32",28,"s[60:61]",18,28,1)
    pk("v_pk_fma_f32",28,"s[62:63]",20,28,0)
    pk("v_pk_fma_f32",28,"s[62:63]",22,28,1)
    pk("v_pk_mul_f32",24,"v[28:29]",24)
    pk("v_pk_mul_f32",26,"v[28:29]",26)
    for v in range(4):
        for ui in range(2):
            pk("v_pk_fma_f32",32+8*ui+2*v,f"s[{56+(v&2)}:{57+(v&2)}]",24+2*ui,32+8*ui+2*v,v&1)
    if i<D-1:
        e(f"s_add_u32 s39, s38, {i+1}"); e("s_cmp_ge_u32 s39, s35"); e("s_cbranch_scc1 km_bend")
e(f"s_add_u32 s38, s38, {D}"); e("s_cmp_lt_u32 s38, s35"); e("s_cbranch_scc1 km_loop")
lab("km_bend")
e("s_waitcnt vmcnt(0)")
e("s_add_u32 s34, s34, 64"); e("s_branch km_batch")
lab("km_done")
e("s_waitcnt vmcnt(0)")
first=True
for ui in range(2):
    for v in range(4):
        for wp in range(2):
            src=64+8*ui+2*v+wp
            e(f"v_lshlrev_b32 v{48+2*wp}, 16, v{src}"); e(f"v_and_b32 v{49+2*wp}, 0xffff0000, v{src}")
        for w in range(4):
            t=32+8*ui+2*v
            if first: pk("v_pk_mul_f32",16+2*w,f"v[{48+(w&2)}:{49+(w&2)}]",t,None,w&1)
            else: pk("v_pk_fma_f32",16+2*w,f"v[{48+(w&2)}:{49+(w&2)}]",t,16+2*w,w&1)
        first=False
for r in range(8): e(f"v_mov_b32 v{24+r}, v{16+r}")
e("s_nop 1")
for r in range(8): e(f"v_permlane32_swap_b32 v{16+r}, v{24+r}")
for r in range(8): e(f"v_add_f32 v{16+r}, v{16+r}, v{24+r}")
e("v_cmp_le_u32 vcc, 32, v0"); e("s_nop 1")
for r in range(4): e(f"v_cndmask_b32 v{16+r}, v{16+r}, v{20+r}, vcc")
e("v_cvt_pk_bf16_f32 v20, v16, v17"); e("v_cvt_pk_bf16_f32 v21, v18, v19")
e("v_lshrrev_b32 v3, 5, v0"); e("v_lshl_add_u32 v3, v3, 8, v2")
e("s_lshl_b32 s39, s2, 9"); e(f"s_add_u32 s39, s39, {WS_AGG}")
e("buffer_store_dword v20, v3, s[12:15], s39 offen"); e("buffer_store_dword v21, v3, s[12:15], s39 offen offset:128")
lab("km_end"); e("s_endpgm"); kd("k4m_kernel",80)

kstart("k5g_kernel")
NT=N*4//16
e("v_lshrrev_b32 v1, 6, v0"); e("s_nop 0"); e("v_readfirstlane_b32 s3, v1")
e("s_lshl_b32 s2, s2, 2"); e("s_nop 0"); e("s_add_u32 s2, s2, s3")
e(f"s_cmp_ge_u32 s2, {NT}"); e("s_cbranch_scc1 kg_end")
e("s_load_dwordx2 s[4:5], s[0:1], 56"); e("s_load_dwordx2 s[6:7], s[0:1], 64"); e("s_load_dwordx2 s[20:21], s[0:1], 80"); e("s_waitcnt lgkmcnt(0)")
srd(8,4,8192); srd(12,6,N*512); srd(16,20,WS_SIZE)
e("v_and_b32 v0, 63, v0"); e("v_and_b32 v1, 15, v0"); e("v_lshrrev_b32 v2, 4, v0")
e("v_lshlrev_b32 v3, 10, v2"); e("v_lshl_add_u32 v3, v1, 1, v3")
for t in range(4):
    for kk in range(2):
        e(f"s_mov_b32 s24, {kk*4096}")
        for i in range(8):
            e(f"buffer_load_ushort v{64+i}, v3, s[8:11], s24 offen offset:{i*128+t*32}")
        e("s_waitcnt vmcnt(0)")
        for i in range(4): e(f"v_lshl_or_b32 v{16+(t*2+kk)*4+i}, v{65+2*i}, 16, v{64+2*i}")
e("v_lshlrev_b32 v4, 7, v1"); e("v_lshl_add_u32 v4, v2, 4, v4")
e("v_lshlrev_b32 v5, 7, v1"); e("v_lshl_add_u32 v5, v2, 3, v5")
lab("kg_loop")
e("s_lshl_b32 s22, s2, 11"); e(f"s_add_u32 s23, s22, {WS_AGG}")
e("buffer_load_dwordx4 v[8:11], v4, s[16:19], s23 offen"); e("buffer_load_dwordx4 v[12:15], v4, s[16:19], s23 offen offset:64"); e("s_waitcnt vmcnt(0)")
for t in range(4):
    e(f"v_mfma_f32_16x16x32_bf16 v[{64+4*t}:{67+4*t}], v[{16+t*8}:{19+t*8}], v[8:11], 0")
for t in range(4):
    e(f"v_mfma_f32_16x16x32_bf16 v[{64+4*t}:{67+4*t}], v[{20+t*8}:{23+t*8}], v[12:15], v[{64+4*t}:{67+4*t}]")
e("s_nop 7"); e("s_nop 3")
for t in range(4):
    e(f"v_cvt_pk_bf16_f32 v{80+2*t}, v{64+4*t}, v{65+4*t}"); e(f"v_cvt_pk_bf16_f32 v{81+2*t}, v{66+4*t}, v{67+4*t}")
    e(f"buffer_store_dwordx2 v[{80+2*t}:{81+2*t}], v5, s[12:15], s22 offen offset:{32*t}")
e("s_add_u32 s2, s2, 2048"); e(f"s_cmp_lt_u32 s2, {NT}"); e("s_cbranch_scc1 kg_loop")
lab("kg_end"); e("s_endpgm"); kd("k5g_kernel",88)

hdr=open('gather_scatter__tensor_product_equiv_mace__graph.s.ref').read().split('\n')
hdr=[l for l in hdr if l.startswith(';') and '@launch' not in l]
L=["; @launch kernel=k0z_kernel grid=(1,1,1) block=(256,1,1) lds=0",
"; @launch kernel=k1h_kernel grid=(400,1,1) block=(256,1,1) lds=1024",
"; @launch kernel=k2s_kernel grid=(400,1,1) block=(256,1,1) lds=44288",
f"; @launch kernel=k3b_kernel grid=({B},1,1) block=(256,1,1) lds=2304",
"; @launch kernel=k4m_kernel grid=(12500,1,1) block=(256,1,1) lds=0",
"; @launch kernel=k5g_kernel grid=(512,1,1) block=(256,1,1) lds=0"]
txt="\n".join(hdr+L)+'\n.amdgcn_target "amdgcn-amd-amdhsa--gfx950"\n.text\n'+"\n".join(out)+'\n.section .rodata,"a"\n'+"\n".join(".p2align 6\n"+k for k in kds)+"\n"
open('gather_scatter__tensor_product_equiv_mace__graph.s','w').write(txt)
```

```python
N=50000; E=800000; B=782
WS_CNT=0x0; WS_CUR=0x1000; WS_BASE=0x2000; WS_NOFF=0x4000
WS_BSRC=0x100000; WS_BF=0x500000; WS_SSRC=0x1200000; WS_SF=0x1600000; WS_AGG=0x2400000
WS_SIZE=268435456; WS_WT=0x80000
out=[]
def e(s): out.append("    "+s)
def lab(s): out.append(s+":")
def srd(d, lo, size):
    e(f"s_mov_b32 s{d}, s{lo}"); e(f"s_and_b32 s{d+1}, s{lo+1}, 0xffff"); e(f"s_mov_b32 s{d+2}, {size:#x}"); e(f"s_mov_b32 s{d+3}, 0x00020000")
def kstart(name):
    out.append(f".globl {name}\n.p2align 8\n.type {name},@function\n{name}:")
def scan64(v):
    for sh in (1,2,4,8):
        e("s_nop 1"); e(f"v_add_u32_dpp v{v}, v{v}, v{v} row_shr:{sh} row_mask:0xf bank_mask:0xf bound_ctrl:0")
    e("s_nop 1"); e(f"v_add_u32_dpp v{v}, v{v}, v{v} row_bcast:15 row_mask:0xa bank_mask:0xf")
    e("s_nop 1"); e(f"v_add_u32_dpp v{v}, v{v}, v{v} row_bcast:31 row_mask:0xc bank_mask:0xf")
    e("s_nop 1")
kds=[]
def kd(name, vgpr, sgpr=96):
    kds.append(f""".amdhsa_kernel {name}
  .amdhsa_next_free_vgpr {vgpr}
  .amdhsa_next_free_sgpr {sgpr}
  .amdhsa_accum_offset {(vgpr+3)//4*4}
  .amdhsa_group_segment_fixed_size 0
  .amdhsa_kernarg_size 88
  .amdhsa_user_sgpr_count 2
  .amdhsa_user_sgpr_kernarg_segment_ptr 1
  .amdhsa_system_sgpr_workgroup_id_x 1
.end_amdhsa_kernel""")

kstart("k0z_kernel")
e("s_cmp_ge_u32 s2, 1"); e("s_cbranch_scc1 k0_end")
e("s_load_dwordx2 s[4:5], s[0:1], 80"); e("s_load_dwordx2 s[6:7], s[0:1], 56"); e("s_waitcnt lgkmcnt(0)")
srd(8,4,WS_SIZE); srd(12,6,8192)
e("v_and_b32 v2, 63, v0"); e("v_lshrrev_b32 v3, 6, v0"); e("v_lshlrev_b32 v8, 11, v3"); e("v_lshl_add_u32 v8, v2, 1, v8")
for i in range(16): e(f"buffer_load_ushort v{16+i}, v8, s[12:15], 0 offen offset:{128*i}")
e("v_lshlrev_b32 v9, 7, v2"); e("v_lshl_add_u32 v9, v3, 5, v9"); e("s_waitcnt vmcnt(0)")
for i in range(8): e(f"v_lshl_or_b32 v{32+i}, v{17+2*i}, 16, v{16+2*i}")
e(f"s_mov_b32 s16, {WS_WT}"); e("buffer_store_dwordx4 v[32:35], v9, s[8:11], s16 offen"); e("buffer_store_dwordx4 v[36:39], v9, s[8:11], s16 offen offset:16")
e("v_lshlrev_b32 v1, 5, v0")
for i in range(4): e(f"v_mov_b32 v{4+i}, 0")
e("buffer_store_dwordx4 v[4:7], v1, s[8:11], 0 offen")
e("buffer_store_dwordx4 v[4:7], v1, s[8:11], 0 offen offset:16")
lab("k0_end"); e("s_endpgm"); kd("k0z_kernel",40)

B=196
def blockscan(v, t, wsumoff):
    e(f"v_mov_b32 v{t}, v{v}"); scan64(t)
    e(f"v_lshrrev_b32 v{t+1}, 6, v0"); e(f"v_lshlrev_b32 v{t+1}, 2, v{t+1}")
    e(f"v_and_b32 v{t+2}, 63, v0"); e(f"v_cmp_eq_u32 vcc, 63, v{t+2}"); e("s_and_saveexec_b64 s[16:17], vcc")
    e(f"ds_write_b32 v{t+1}, v{t} offset:{wsumoff}"); e("s_mov_b64 exec, s[16:17]")
    e("s_waitcnt lgkmcnt(0)"); e("s_barrier")
    e(f"v_mov_b32 v{t+1}, 0")
    for k in range(3): e(f"ds_read_b32 v{t+2+k}, v{t+1} offset:{wsumoff+4*k}")
    e("s_waitcnt lgkmcnt(0)")
    e(f"v_sub_u32 v{v}, v{t}, v{v}")
    for k in range(3):
        e(f"v_cmp_le_u32 vcc, {64*(k+1)}, v0"); e("s_nop 1"); e(f"v_cndmask_b32 v{t+2+k}, 0, v{t+2+k}, vcc"); e(f"v_add_u32 v{v}, v{v}, v{t+2+k}")
    e("s_barrier")

kstart("k1h_kernel")
e("s_cmp_ge_u32 s2, 400"); e("s_cbranch_scc1 k1_end")
e("s_load_dwordx2 s[4:5], s[0:1], 16"); e("s_load_dwordx2 s[6:7], s[0:1], 80"); e("s_waitcnt lgkmcnt(0)")
srd(8,4,E*4); srd(12,6,0x2000)
e("v_lshlrev_b32 v1, 2, v0"); e("v_mov_b32 v2, 0"); e("ds_write_b32 v1, v2")
e("s_mul_i32 s3, s2, 8000")
e("v_lshlrev_b32 v6, 5, v0"); e("v_add_u32 v6, s3, v6")
e("v_cmp_gt_u32 vcc, 250, v0"); e("s_waitcnt lgkmcnt(0)"); e("s_barrier")
e("s_and_saveexec_b64 s[16:17], vcc")
e("buffer_load_dwordx4 v[8:11], v6, s[8:11], 0 offen"); e("buffer_load_dwordx4 v[12:15], v6, s[8:11], 0 offen offset:16")
e("v_mov_b32 v7, 1"); e("s_waitcnt vmcnt(0)")
for i in range(8):
    e(f"v_lshrrev_b32 v{8+i}, 8, v{8+i}"); e(f"v_lshlrev_b32 v{8+i}, 2, v{8+i}")
for i in range(8): e(f"ds_add_u32 v{8+i}, v7")
e("s_mov_b64 exec, s[16:17]"); e("s_waitcnt lgkmcnt(0)"); e("s_barrier")
e("ds_read_b32 v2, v1"); e("s_waitcnt lgkmcnt(0)")
e("buffer_atomic_add v2, v1, s[12:15], 0 offen")
lab("k1_end"); e("s_endpgm"); kd("k1h_kernel",16)

L_H=0; L_CUR=1024; L_DL=2048; L_WS=3072; L_IDX=4096; L_F=12288
kstart("k2s_kernel")
e("s_cmp_ge_u32 s2, 400"); e("s_cbranch_scc1 k2_end")
e("s_load_dwordx4 s[4:7], s[0:1], 8"); e("s_load_dwordx4 s[20:23], s[0:1], 24"); e("s_load_dwordx2 s[24:25], s[0:1], 80"); e("s_waitcnt lgkmcnt(0)")
srd(8,4,E*4); srd(12,6,E*4); srd(28,20,E*8); srd(32,22,E*8); srd(36,24,WS_SIZE)
e("v_lshlrev_b32 v1, 2, v0"); e("v_mov_b32 v2, 0"); e(f"ds_write_b32 v1, v2 offset:{L_H}")
e("buffer_load_dword v56, v1, s[36:39], 0 offen")
e("s_mul_i32 s3, s2, 8000")
e("v_lshlrev_b32 v6, 5, v0"); e("v_add_u32 v6, s3, v6"); e("v_lshlrev_b32 v7, 1, v6")
e("v_cmp_gt_u32 vcc, 250, v0"); e("s_and_saveexec_b64 s[18:19], vcc")
e("buffer_load_dwordx4 v[8:11], v6, s[12:15], 0 offen"); e("buffer_load_dwordx4 v[12:15], v6, s[12:15], 0 offen offset:16")
e("buffer_load_dwordx4 v[16:19], v6, s[8:11], 0 offen"); e("buffer_load_dwordx4 v[20:23], v6, s[8:11], 0 offen offset:16")
for i in range(4): e(f"buffer_load_dwordx4 v[{24+4*i}:{27+4*i}], v7, s[28:31], 0 offen offset:{16*i}")
for i in range(4): e(f"buffer_load_dwordx4 v[{40+4*i}:{43+4*i}], v7, s[32:35], 0 offen offset:{16*i}")
e("s_mov_b64 exec, s[18:19]"); e("s_waitcnt vmcnt(0) lgkmcnt(0)"); e("s_barrier")
e("v_mov_b32 v57, v56"); blockscan(57,60,L_WS)
e("s_cmp_lg_u32 s2, 0"); e("s_cbranch_scc1 k2_nobase")
e(f"s_mov_b32 s42, {WS_BASE}"); e("buffer_store_dword v57, v1, s[36:39], s42 offen")
e("v_add_u32 v58, v57, v56"); e("v_cmp_eq_u32 vcc, 255, v0"); e("s_and_saveexec_b64 s[16:17], vcc")
e("buffer_store_dword v58, v1, s[36:39], s42 offen offset:4"); e("s_mov_b64 exec, s[16:17]")
lab("k2_nobase")
e("v_mov_b32 v79, 1")
e("s_mov_b64 exec, s[18:19]"); e("v_cmp_gt_u32 vcc, 250, v0"); e("s_and_saveexec_b64 s[16:17], vcc")
for i in range(8):
    e(f"v_lshrrev_b32 v{68+i}, 8, v{8+i}"); e(f"v_lshlrev_b32 v{68+i}, 2, v{68+i}")
for i in range(8): e(f"ds_add_u32 v{68+i}, v79 offset:{L_H}")
e("s_mov_b64 exec, s[16:17]"); e("s_waitcnt lgkmcnt(0)"); e("s_barrier")
e(f"ds_read_b32 v58, v1 offset:{L_H}"); e("s_waitcnt lgkmcnt(0)")
e("v_mov_b32 v59, v58"); e(f"s_mov_b32 s42, {WS_CUR}")
e("buffer_atomic_add v59, v1, s[36:39], s42 offen sc0")
blockscan(58,60,L_WS)
e("s_waitcnt vmcnt(0)")
e("v_add_u32 v59, v59, v57"); e("v_sub_u32 v59, v59, v58")
e(f"ds_write_b32 v1, v58 offset:{L_CUR}"); e(f"ds_write_b32 v1, v59 offset:{L_DL}"); e("s_waitcnt lgkmcnt(0)"); e("s_barrier")
e("v_cmp_gt_u32 vcc, 250, v0"); e("s_and_saveexec_b64 s[16:17], vcc")
for i in range(8): e(f"ds_add_rtn_u32 v{68+i}, v{68+i}, v79 offset:{L_CUR}")
e("s_waitcnt lgkmcnt(0)")
for i in range(8):
    e(f"v_lshlrev_b32 v{8+i}, 16, v{8+i}"); e(f"v_or_b32 v{8+i}, v{8+i}, v{16+i}")
    e(f"v_lshlrev_b32 v{76}, 2, v{68+i}"); e(f"ds_write_b32 v76, v{8+i} offset:{L_IDX}")
    e(f"v_lshlrev_b32 v{77}, 4, v{68+i}")
    e(f"ds_write_b64 v77, v[{24+2*i}:{25+2*i}] offset:{L_F}"); e(f"ds_write_b64 v77, v[{40+2*i}:{41+2*i}] offset:{L_F+8}")
e("s_mov_b64 exec, s[16:17]"); e("s_waitcnt lgkmcnt(0)"); e("s_barrier")
e(f"s_mov_b32 s40, {WS_BSRC}"); e(f"s_mov_b32 s41, {WS_BF}")
e("v_lshlrev_b32 v2, 4, v0")
for it in range(8):
    if it==7:
        e("v_cmp_gt_u32 vcc, 208, v0"); e("s_and_saveexec_b64 s[16:17], vcc"); e("s_cbranch_execz k2_end")
    e(f"ds_read_b32 v{8+it}, v1 offset:{L_IDX+1024*it}"); e(f"ds_read_b128 v[{24+4*it}:{27+4*it}], v2 offset:{L_F+4096*it}")
    e("s_waitcnt lgkmcnt(1)")
    e(f"v_lshrrev_b32 v60, 24, v{8+it}"); e("v_lshlrev_b32 v60, 2, v60"); e(f"ds_read_b32 v60, v60 offset:{L_DL}")
    e(f"v_and_b32 v{8+it}, 0xffffff, v{8+it}"); e("s_waitcnt lgkmcnt(0)")
    e(f"v_add3_u32 v60, v60, v0, {256*it}" if 256*it<=64 else f"v_add_u32 v60, {256*it}, v60")
    if 256*it>64: e("v_add_u32 v60, v60, v0")
    e("v_lshlrev_b32 v61, 4, v60"); e("v_lshlrev_b32 v60, 2, v60")
    e(f"buffer_store_dword v{8+it}, v60, s[36:39], s40 offen"); e(f"buffer_store_dwordx4 v[{24+4*it}:{27+4*it}], v61, s[36:39], s41 offen")
lab("k2_end"); e("s_endpgm"); kd("k2s_kernel",80)

kstart("k3b_kernel")
e(f"s_cmp_ge_u32 s2, {B}"); e("s_cbranch_scc1 kb_end")
e("s_load_dwordx2 s[4:5], s[0:1], 80"); e("s_waitcnt lgkmcnt(0)")
srd(8,4,WS_SIZE)
e("s_lshl_b32 s3, s2, 2"); e(f"s_add_u32 s3, s3, {WS_BASE}"); e("s_add_u32 s6, s4, s3"); e("s_addc_u32 s7, s5, 0")
e("s_load_dwordx2 s[12:13], s[6:7], 0")
e("v_lshlrev_b32 v1, 2, v0"); e("v_mov_b32 v2, 0"); e("ds_write_b32 v1, v2")
e("v_mov_b32 v3, 1"); e(f"s_mov_b32 s20, {WS_BSRC}"); e("s_waitcnt lgkmcnt(0)"); e("s_barrier")
e("v_add_u32 v4, s12, v0")
lab("kb_l1")
e("v_cmp_gt_u32 vcc, s13, v4"); e("s_and_saveexec_b64 s[16:17], vcc"); e("s_cbranch_execz kb_l1e")
e("v_lshlrev_b32 v5, 2, v4"); e("buffer_load_dword v6, v5, s[8:11], s20 offen"); e("s_waitcnt vmcnt(0)")
e("v_bfe_u32 v6, v6, 16, 8"); e("v_lshlrev_b32 v6, 2, v6"); e("ds_add_u32 v6, v3")
e("v_add_u32 v4, 1024, v4"); e("s_branch kb_l1")
lab("kb_l1e"); e("s_mov_b64 exec, -1"); e("s_waitcnt lgkmcnt(0)"); e("s_barrier")
e("ds_read_b32 v8, v1"); e("s_waitcnt lgkmcnt(0)"); blockscan(8,16,5120)
e("v_add_u32 v8, s12, v8"); e("v_cmp_gt_u32 vcc, 256, v0"); e("s_and_saveexec_b64 s[16:17], vcc"); e("s_cbranch_execz kb_sk"); e("ds_write_b32 v1, v8 offset:4096")
e("s_lshl_b32 s21, s2, 8"); e("v_add_u32 v9, s21, v0"); e(f"v_cmp_ge_u32 vcc, {N}, v9"); e("s_and_b64 exec, exec, vcc")
e("s_cbranch_execz kb_sk")
e("v_lshlrev_b32 v9, 2, v9"); e(f"s_mov_b32 s20, {WS_NOFF}"); e("buffer_store_dword v8, v9, s[8:11], s20 offen")
lab("kb_sk"); e("s_mov_b64 exec, -1"); e("s_waitcnt lgkmcnt(0)"); e("s_barrier")
e("v_add_u32 v4, s12, v0")
e(f"s_mov_b32 s20, {WS_BSRC}"); e(f"s_mov_b32 s21, {WS_BF}"); e(f"s_mov_b32 s22, {WS_SSRC}"); e(f"s_mov_b32 s23, {WS_SF}")
lab("kb_l2")
e("v_cmp_gt_u32 vcc, s13, v4"); e("s_and_saveexec_b64 s[16:17], vcc"); e("s_cbranch_execz kb_end")
e("v_lshlrev_b32 v5, 2, v4"); e("v_lshlrev_b32 v10, 4, v4")
e("buffer_load_dword v6, v5, s[8:11], s20 offen"); e("buffer_load_dwordx4 v[12:15], v10, s[8:11], s21 offen"); e("s_waitcnt vmcnt(1)")
e("v_bfe_u32 v7, v6, 16, 8"); e("v_lshlrev_b32 v7, 2, v7"); e("ds_add_rtn_u32 v7, v7, v3 offset:4096")
e("v_and_b32 v6, 0xffff, v6"); e("s_waitcnt lgkmcnt(0)")
e("v_lshlrev_b32 v8, 4, v7"); e("v_lshlrev_b32 v7, 2, v7")
e("buffer_store_dword v6, v7, s[8:11], s22 offen"); e("s_waitcnt vmcnt(1)")
e("buffer_store_dwordx4 v[12:15], v8, s[8:11], s23 offen")
e("v_add_u32 v4, 1024, v4"); e("s_branch kb_l2")
lab("kb_end"); e("s_endpgm"); kd("k3b_kernel",24)

D=8
def pk(op,d,s0,s1,s2=None,sel0=None):
    ops=f"v[{d}:{d+1}], {s0}, v[{s1}:{s1+1}]"+(f", v[{s2}:{s2+1}]" if s2 is not None else "")
    n=3 if s2 is not None else 2
    if sel0 is None: e(f"{op} {ops}")
    else:
        lo=[sel0]+[0]*(n-1); hi=[sel0]+[1]*(n-1)
        e(f"{op} {ops} op_sel:[{','.join(map(str,lo))}] op_sel_hi:[{','.join(map(str,hi))}]")
kstart("k4m_kernel")
e("v_lshrrev_b32 v1, 6, v0"); e("s_nop 0"); e("v_readfirstlane_b32 s3, v1")
e("s_lshl_b32 s2, s2, 2"); e("s_mov_b32 s65, s2"); e("s_mov_b32 s64, s3"); e("s_add_u32 s2, s2, s3")
e(f"s_cmp_ge_u32 s2, {N}"); e("s_cbranch_scc1 km_end")
e("s_load_dwordx2 s[66:67], s[0:1], 64"); e("s_load_dwordx2 s[4:5], s[0:1], 0"); e("s_load_dwordx4 s[20:23], s[0:1], 40"); e("s_load_dwordx2 s[6:7], s[0:1], 80"); e("s_waitcnt lgkmcnt(0)")
srd(8,4,N*512); srd(12,6,WS_SIZE); srd(24,20,128); srd(28,22,512); srd(68,66,N*512)
e("s_lshl_b32 s3, s2, 2"); e(f"s_add_u32 s3, s3, {WS_NOFF}"); e("s_add_u32 s16, s6, s3"); e("s_addc_u32 s17, s7, 0")
e("s_load_dwordx2 s[18:19], s[16:17], 0")
e("v_and_b32 v0, 63, v0")
e("v_lshlrev_b32 v1, 2, v0")
e("v_and_b32 v2, 31, v0"); e("v_lshlrev_b32 v2, 2, v2")
for d in range(4): e(f"buffer_load_dword v{32+d}, v2, s[28:31], 0 offen offset:{128*d}")
e("v_lshrrev_b32 v3, 5, v0"); e("v_lshlrev_b32 v3, 5, v3")
for q in range(4): e(f"buffer_load_dwordx4 v[{64+4*q}:{67+4*q}], v3, s[24:27], 0 offen offset:{(q&1)*16+(q>>1)*64}")
e("s_waitcnt vmcnt(4)")
for d in range(4):
    e(f"v_lshlrev_b32 v{16+2*d}, 16, v{32+d}"); e(f"v_and_b32 v{17+2*d}, 0xffff0000, v{32+d}")
for i in range(16): e(f"v_mov_b32 v{32+i}, 0")
e("s_waitcnt lgkmcnt(0)")
e(f"s_mov_b32 s32, {WS_SSRC}"); e(f"s_mov_b32 s33, {WS_SF}")
e("s_mov_b32 s34, s18")
lab("km_batch")
e("s_cmp_ge_u32 s34, s19"); e("s_cbranch_scc1 km_done")
e("s_sub_u32 s35, s19, s34"); e("s_min_u32 s35, s35, 64")
e("v_add_u32 v3, s34, v0"); e("v_lshlrev_b32 v4, 2, v3"); e("v_lshlrev_b32 v5, 4, v3")
for i in (8,12,13,14,15): e(f"v_mov_b32 v{i}, 0")
e("v_cmp_gt_u32 vcc, s35, v0"); e("s_and_saveexec_b64 s[36:37], vcc")
e("buffer_load_dword v8, v4, s[12:15], s32 offen"); e("buffer_load_dwordx4 v[12:15], v5, s[12:15], s33 offen" )
e("s_mov_b64 exec, s[36:37]"); e("s_waitcnt vmcnt(0)")
e("v_lshlrev_b32 v8, 9, v8"); e("v_mov_b32 v9, 0x7f000000"); e("v_cndmask_b32 v8, v9, v8, vcc")
e("s_nop 1")
for i in range(D): e(f"v_readlane_b32 s{40+i}, v8, {i}")
e("s_nop 4")
for i in range(D):
    e(f"buffer_load_dword v{48+2*i}, v1, s[8:11], s{40+i} offen"); e(f"buffer_load_dword v{49+2*i}, v1, s[8:11], s{40+i} offen offset:256")
e("s_mov_b32 s38, 0")
lab("km_loop")
for i in range(D):
    e(f"s_add_u32 s39, s38, {i}")
    for q in range(4): e(f"v_readlane_b32 s{48+q}, v{12+q}, s39")
    e(f"s_add_u32 s39, s38, {i+D}"); e("s_and_b32 s39, s39, 63"); e(f"v_readlane_b32 s{40+i}, v8, s39")
    for q in range(4):
        e(f"s_lshl_b32 s{56+2*q}, s{48+q}, 16"); e(f"s_and_b32 s{57+2*q}, s{48+q}, 0xffff0000")
    e(f"s_waitcnt vmcnt({2*(D-1)})")
    b=48+2*i
    e(f"v_lshlrev_b32 v24, 16, v{b}"); e(f"v_and_b32 v25, 0xffff0000, v{b}"); e(f"v_lshlrev_b32 v26, 16, v{b+1}"); e(f"v_and_b32 v27, 0xffff0000, v{b+1}")
    e(f"s_add_u32 s39, s38, {i+D}"); e("s_cmp_ge_u32 s39, s35"); e(f"s_cselect_b32 s{40+i}, 0x7f000000, s{40+i}")
    e(f"buffer_load_dword v{b}, v1, s[8:11], s{40+i} offen"); e(f"buffer_load_dword v{b+1}, v1, s[8:11], s{40+i} offen offset:256")
    pk("v_pk_mul_f32",28,"s[60:61]",16,None,0)
    pk("v_pk_fma_f32",28,"s[60:61]",18,28,1)
    pk("v_pk_fma_f32",28,"s[62:63]",20,28,0)
    pk("v_pk_fma_f32",28,"s[62:63]",22,28,1)
    pk("v_pk_mul_f32",24,"v[28:29]",24)
    pk("v_pk_mul_f32",26,"v[28:29]",26)
    for v in range(4):
        for ui in range(2):
            pk("v_pk_fma_f32",32+8*ui+2*v,f"s[{56+(v&2)}:{57+(v&2)}]",24+2*ui,32+8*ui+2*v,v&1)
    if i<D-1:
        e(f"s_add_u32 s39, s38, {i+1}"); e("s_cmp_ge_u32 s39, s35"); e("s_cbranch_scc1 km_bend")
e(f"s_add_u32 s38, s38, {D}"); e("s_cmp_lt_u32 s38, s35"); e("s_cbranch_scc1 km_loop")
lab("km_bend")
e("s_waitcnt vmcnt(0)")
e("s_add_u32 s34, s34, 64"); e("s_branch km_batch")
lab("km_done")
e("s_waitcnt vmcnt(0)")
first=True
for ui in range(2):
    for v in range(4):
        for wp in range(2):
            src=64+8*ui+2*v+wp
            e(f"v_lshlrev_b32 v{48+2*wp}, 16, v{src}"); e(f"v_and_b32 v{49+2*wp}, 0xffff0000, v{src}")
        for w in range(4):
            t=32+8*ui+2*v
            if first: pk("v_pk_mul_f32",16+2*w,f"v[{48+(w&2)}:{49+(w&2)}]",t,None,w&1)
            else: pk("v_pk_fma_f32",16+2*w,f"v[{48+(w&2)}:{49+(w&2)}]",t,16+2*w,w&1)
        first=False
for r in range(8): e(f"v_mov_b32 v{24+r}, v{16+r}")
e("s_nop 1")
for r in range(8): e(f"v_permlane32_swap_b32 v{16+r}, v{24+r}")
for r in range(8): e(f"v_add_f32 v{16+r}, v{16+r}, v{24+r}")
e("v_cmp_le_u32 vcc, 32, v0"); e("s_nop 1")
for r in range(4): e(f"v_cndmask_b32 v{16+r}, v{16+r}, v{20+r}, vcc")
e("v_cvt_pk_bf16_f32 v20, v16, v17"); e("v_cvt_pk_bf16_f32 v21, v18, v19")
e("v_and_b32 v4, 15, v0"); e("v_lshrrev_b32 v5, 4, v0")
e("v_lshlrev_b32 v6, 7, v4"); e("v_lshl_add_u32 v6, v5, 4, v6")
e("s_lshl_b32 s39, s64, 11"); e(f"s_add_u32 s39, s39, {WS_WT}")
e("buffer_load_dwordx4 v[32:35], v6, s[12:15], s39 offen"); e("buffer_load_dwordx4 v[36:39], v6, s[12:15], s39 offen offset:64")
e("v_lshrrev_b32 v3, 5, v0"); e("v_mul_u32_u24 v3, 288, v3"); e("v_add_u32 v3, v3, v2")
e("s_mul_i32 s39, s64, 576"); e("v_add_u32 v3, s39, v3")
e("ds_write_b32 v3, v20"); e("ds_write_b32 v3, v21 offset:144")
e("s_waitcnt lgkmcnt(0)"); e("s_barrier")
e("v_mul_u32_u24 v7, 144, v4"); e("v_lshl_add_u32 v7, v5, 4, v7")
e("ds_read_b128 v[40:43], v7"); e("ds_read_b128 v[44:47], v7 offset:64")
e("s_waitcnt vmcnt(0) lgkmcnt(0)")
e("v_mfma_f32_16x16x32_bf16 v[48:51], v[32:35], v[40:43], 0")
e("v_mfma_f32_16x16x32_bf16 v[48:51], v[36:39], v[44:47], v[48:51]")
e("v_lshlrev_b32 v6, 7, v4"); e("v_lshl_add_u32 v6, v5, 3, v6")
e("s_lshl_b32 s39, s65, 9"); e("s_lshl_b32 s38, s64, 5"); e("s_add_u32 s39, s39, s38")
e("s_nop 7"); e("s_nop 3")
e("v_cvt_pk_bf16_f32 v52, v48, v49"); e("v_cvt_pk_bf16_f32 v53, v50, v51")
e("buffer_store_dwordx2 v[52:53], v6, s[68:71], s39 offen")
lab("km_end"); e("s_endpgm"); kd("k4m_kernel",80)

hdr=open('gather_scatter__tensor_product_equiv_mace__graph.s.ref').read().split('\n')
hdr=[l for l in hdr if l.startswith(';') and '@launch' not in l]
L=["; @launch kernel=k0z_kernel grid=(1,1,1) block=(256,1,1) lds=0",
"; @launch kernel=k1h_kernel grid=(400,1,1) block=(256,1,1) lds=1024",
"; @launch kernel=k2s_kernel grid=(400,1,1) block=(256,1,1) lds=44288",
f"; @launch kernel=k3b_kernel grid=({B},1,1) block=(1024,1,1) lds=5248",
"; @launch kernel=k4m_kernel grid=(12500,1,1) block=(256,1,1) lds=2304"]
txt="\n".join(hdr+L)+'\n.amdgcn_target "amdgcn-amd-amdhsa--gfx950"\n.text\n'+"\n".join(out)+'\n.section .rodata,"a"\n'+"\n".join(".p2align 6\n"+k for k in kds)+"\n"
open('gather_scatter__tensor_product_equiv_mace__graph.s','w').write(txt)
```

```python
N=50000; E=800000; B=782
WS_CNT=0x0; WS_CUR=0x1000; WS_BASE=0x2000; WS_NOFF=0x4000
WS_BSRC=0x100000; WS_BF=0x500000; WS_SSRC=0x1200000; WS_SF=0x1600000; WS_AGG=0x2400000
WS_SIZE=268435456; WS_WT=0x80000
out=[]
def e(s): out.append("    "+s)
def lab(s): out.append(s+":")
def srd(d, lo, size):
    e(f"s_mov_b32 s{d}, s{lo}"); e(f"s_and_b32 s{d+1}, s{lo+1}, 0xffff"); e(f"s_mov_b32 s{d+2}, {size:#x}"); e(f"s_mov_b32 s{d+3}, 0x00020000")
def kstart(name):
    out.append(f".globl {name}\n.p2align 8\n.type {name},@function\n{name}:")
def scan64(v):
    for sh in (1,2,4,8):
        e("s_nop 1"); e(f"v_add_u32_dpp v{v}, v{v}, v{v} row_shr:{sh} row_mask:0xf bank_mask:0xf bound_ctrl:0")
    e("s_nop 1"); e(f"v_add_u32_dpp v{v}, v{v}, v{v} row_bcast:15 row_mask:0xa bank_mask:0xf")
    e("s_nop 1"); e(f"v_add_u32_dpp v{v}, v{v}, v{v} row_bcast:31 row_mask:0xc bank_mask:0xf")
    e("s_nop 1")
kds=[]
def kd(name, vgpr, sgpr=96):
    kds.append(f""".amdhsa_kernel {name}
  .amdhsa_next_free_vgpr {vgpr}
  .amdhsa_next_free_sgpr {sgpr}
  .amdhsa_accum_offset {(vgpr+3)//4*4}
  .amdhsa_group_segment_fixed_size 0
  .amdhsa_kernarg_size 88
  .amdhsa_user_sgpr_count 2
  .amdhsa_user_sgpr_kernarg_segment_ptr 1
  .amdhsa_system_sgpr_workgroup_id_x 1
.end_amdhsa_kernel""")

kstart("k0z_kernel")
e("s_cmp_ge_u32 s2, 1"); e("s_cbranch_scc1 k0_end")
e("s_load_dwordx2 s[4:5], s[0:1], 80"); e("s_load_dwordx2 s[6:7], s[0:1], 56"); e("s_waitcnt lgkmcnt(0)")
srd(8,4,WS_SIZE); srd(12,6,8192)
e("v_and_b32 v2, 63, v0"); e("v_lshrrev_b32 v3, 6, v0"); e("v_lshlrev_b32 v8, 11, v3"); e("v_lshl_add_u32 v8, v2, 1, v8")
for i in range(16): e(f"buffer_load_ushort v{16+i}, v8, s[12:15], 0 offen offset:{128*i}")
e("v_lshlrev_b32 v9, 7, v2"); e("v_lshl_add_u32 v9, v3, 5, v9"); e("s_waitcnt vmcnt(0)")
for i in range(8): e(f"v_lshl_or_b32 v{32+i}, v{17+2*i}, 16, v{16+2*i}")
e(f"s_mov_b32 s16, {WS_WT}"); e("buffer_store_dwordx4 v[32:35], v9, s[8:11], s16 offen"); e("buffer_store_dwordx4 v[36:39], v9, s[8:11], s16 offen offset:16")
e("v_lshlrev_b32 v1, 5, v0")
for i in range(4): e(f"v_mov_b32 v{4+i}, 0")
e("buffer_store_dwordx4 v[4:7], v1, s[8:11], 0 offen")
e("buffer_store_dwordx4 v[4:7], v1, s[8:11], 0 offen offset:16")
lab("k0_end"); e("s_endpgm"); kd("k0z_kernel",40)

B=196
def blockscan(v, t, wsumoff):
    e(f"v_mov_b32 v{t}, v{v}"); scan64(t)
    e(f"v_lshrrev_b32 v{t+1}, 6, v0"); e(f"v_lshlrev_b32 v{t+1}, 2, v{t+1}")
    e(f"v_and_b32 v{t+2}, 63, v0"); e(f"v_cmp_eq_u32 vcc, 63, v{t+2}"); e("s_and_saveexec_b64 s[16:17], vcc")
    e(f"ds_write_b32 v{t+1}, v{t} offset:{wsumoff}"); e("s_mov_b64 exec, s[16:17]")
    e("s_waitcnt lgkmcnt(0)"); e("s_barrier")
    e(f"v_mov_b32 v{t+1}, 0")
    for k in range(3): e(f"ds_read_b32 v{t+2+k}, v{t+1} offset:{wsumoff+4*k}")
    e("s_waitcnt lgkmcnt(0)")
    e(f"v_sub_u32 v{v}, v{t}, v{v}")
    for k in range(3):
        e(f"v_cmp_le_u32 vcc, {64*(k+1)}, v0"); e("s_nop 1"); e(f"v_cndmask_b32 v{t+2+k}, 0, v{t+2+k}, vcc"); e(f"v_add_u32 v{v}, v{v}, v{t+2+k}")
    e("s_barrier")

kstart("k1h_kernel")
e("s_cmp_ge_u32 s2, 400"); e("s_cbranch_scc1 k1_end")
e("s_load_dwordx2 s[4:5], s[0:1], 16"); e("s_load_dwordx2 s[6:7], s[0:1], 80"); e("s_waitcnt lgkmcnt(0)")
srd(8,4,E*4); srd(12,6,0x2000)
e("v_lshlrev_b32 v1, 2, v0"); e("v_mov_b32 v2, 0"); e("ds_write_b32 v1, v2")
e("s_mul_i32 s3, s2, 8000")
e("v_lshlrev_b32 v6, 5, v0"); e("v_add_u32 v6, s3, v6")
e("v_cmp_gt_u32 vcc, 250, v0"); e("s_waitcnt lgkmcnt(0)"); e("s_barrier")
e("s_and_saveexec_b64 s[16:17], vcc")
e("buffer_load_dwordx4 v[8:11], v6, s[8:11], 0 offen"); e("buffer_load_dwordx4 v[12:15], v6, s[8:11], 0 offen offset:16")
e("v_mov_b32 v7, 1"); e("s_waitcnt vmcnt(0)")
for i in range(8):
    e(f"v_lshrrev_b32 v{8+i}, 8, v{8+i}"); e(f"v_lshlrev_b32 v{8+i}, 2, v{8+i}")
for i in range(8): e(f"ds_add_u32 v{8+i}, v7")
e("s_mov_b64 exec, s[16:17]"); e("s_waitcnt lgkmcnt(0)"); e("s_barrier")
e("ds_read_b32 v2, v1"); e("s_waitcnt lgkmcnt(0)")
e("buffer_atomic_add v2, v1, s[12:15], 0 offen")
lab("k1_end"); e("s_endpgm"); kd("k1h_kernel",16)

L_H=0; L_CUR=1024; L_DL=2048; L_WS=3072; L_IDX=4096; L_F=12288
kstart("k2s_kernel")
e("s_cmp_ge_u32 s2, 400"); e("s_cbranch_scc1 k2_end")
e("s_load_dwordx4 s[4:7], s[0:1], 8"); e("s_load_dwordx4 s[20:23], s[0:1], 24"); e("s_load_dwordx2 s[24:25], s[0:1], 80"); e("s_waitcnt lgkmcnt(0)")
srd(8,4,E*4); srd(12,6,E*4); srd(28,20,E*8); srd(32,22,E*8); srd(36,24,WS_SIZE)
e("v_lshlrev_b32 v1, 2, v0"); e("v_mov_b32 v2, 0"); e(f"ds_write_b32 v1, v2 offset:{L_H}")
e("buffer_load_dword v56, v1, s[36:39], 0 offen")
e("s_mul_i32 s3, s2, 8000")
e("v_lshlrev_b32 v6, 5, v0"); e("v_add_u32 v6, s3, v6"); e("v_lshlrev_b32 v7, 1, v6")
e("v_cmp_gt_u32 vcc, 250, v0"); e("s_and_saveexec_b64 s[18:19], vcc")
e("buffer_load_dwordx4 v[8:11], v6, s[12:15], 0 offen"); e("buffer_load_dwordx4 v[12:15], v6, s[12:15], 0 offen offset:16")
e("buffer_load_dwordx4 v[16:19], v6, s[8:11], 0 offen"); e("buffer_load_dwordx4 v[20:23], v6, s[8:11], 0 offen offset:16")
for i in range(4): e(f"buffer_load_dwordx4 v[{24+4*i}:{27+4*i}], v7, s[28:31], 0 offen offset:{16*i}")
for i in range(4): e(f"buffer_load_dwordx4 v[{40+4*i}:{43+4*i}], v7, s[32:35], 0 offen offset:{16*i}")
e("s_mov_b64 exec, s[18:19]"); e("s_waitcnt vmcnt(0) lgkmcnt(0)"); e("s_barrier")
e("v_mov_b32 v57, v56"); blockscan(57,60,L_WS)
e("s_cmp_lg_u32 s2, 0"); e("s_cbranch_scc1 k2_nobase")
e(f"s_mov_b32 s42, {WS_BASE}"); e("buffer_store_dword v57, v1, s[36:39], s42 offen")
e("v_add_u32 v58, v57, v56"); e("v_cmp_eq_u32 vcc, 255, v0"); e("s_and_saveexec_b64 s[16:17], vcc")
e("buffer_store_dword v58, v1, s[36:39], s42 offen offset:4"); e("s_mov_b64 exec, s[16:17]")
lab("k2_nobase")
e("v_mov_b32 v79, 1")
e("s_mov_b64 exec, s[18:19]"); e("v_cmp_gt_u32 vcc, 250, v0"); e("s_and_saveexec_b64 s[16:17], vcc")
for i in range(8):
    e(f"v_lshrrev_b32 v{68+i}, 8, v{8+i}"); e(f"v_lshlrev_b32 v{68+i}, 2, v{68+i}")
for i in range(8): e(f"ds_add_u32 v{68+i}, v79 offset:{L_H}")
e("s_mov_b64 exec, s[16:17]"); e("s_waitcnt lgkmcnt(0)"); e("s_barrier")
e(f"ds_read_b32 v58, v1 offset:{L_H}"); e("s_waitcnt lgkmcnt(0)")
e("v_mov_b32 v59, v58"); e(f"s_mov_b32 s42, {WS_CUR}")
e("buffer_atomic_add v59, v1, s[36:39], s42 offen sc0")
blockscan(58,60,L_WS)
e("s_waitcnt vmcnt(0)")
e("v_add_u32 v59, v59, v57"); e("v_sub_u32 v59, v59, v58")
e(f"ds_write_b32 v1, v58 offset:{L_CUR}"); e(f"ds_write_b32 v1, v59 offset:{L_DL}"); e("s_waitcnt lgkmcnt(0)"); e("s_barrier")
e("v_cmp_gt_u32 vcc, 250, v0"); e("s_and_saveexec_b64 s[16:17], vcc")
for i in range(8): e(f"ds_add_rtn_u32 v{68+i}, v{68+i}, v79 offset:{L_CUR}")
e("s_waitcnt lgkmcnt(0)")
for i in range(8):
    e(f"v_lshlrev_b32 v{8+i}, 16, v{8+i}"); e(f"v_or_b32 v{8+i}, v{8+i}, v{16+i}")
    e(f"v_lshlrev_b32 v{76}, 2, v{68+i}"); e(f"ds_write_b32 v76, v{8+i} offset:{L_IDX}")
    e(f"v_lshlrev_b32 v{77}, 4, v{68+i}")
    e(f"ds_write_b64 v77, v[{24+2*i}:{25+2*i}] offset:{L_F}"); e(f"ds_write_b64 v77, v[{40+2*i}:{41+2*i}] offset:{L_F+8}")
e("s_mov_b64 exec, s[16:17]"); e("s_waitcnt lgkmcnt(0)"); e("s_barrier")
e(f"s_mov_b32 s40, {WS_BSRC}"); e(f"s_mov_b32 s41, {WS_BF}")
e("v_lshlrev_b32 v2, 4, v0")
for it in range(8):
    if it==7:
        e("v_cmp_gt_u32 vcc, 208, v0"); e("s_and_saveexec_b64 s[16:17], vcc"); e("s_cbranch_execz k2_end")
    e(f"ds_read_b32 v{8+it}, v1 offset:{L_IDX+1024*it}"); e(f"ds_read_b128 v[{24+4*it}:{27+4*it}], v2 offset:{L_F+4096*it}")
    e("s_waitcnt lgkmcnt(1)")
    e(f"v_lshrrev_b32 v60, 24, v{8+it}"); e("v_lshlrev_b32 v60, 2, v60"); e(f"ds_read_b32 v60, v60 offset:{L_DL}")
    e(f"v_and_b32 v{8+it}, 0xffffff, v{8+it}"); e("s_waitcnt lgkmcnt(0)")
    e(f"v_add3_u32 v60, v60, v0, {256*it}" if 256*it<=64 else f"v_add_u32 v60, {256*it}, v60")
    if 256*it>64: e("v_add_u32 v60, v60, v0")
    e("v_lshlrev_b32 v61, 4, v60"); e("v_lshlrev_b32 v60, 2, v60")
    e(f"buffer_store_dword v{8+it}, v60, s[36:39], s40 offen"); e(f"buffer_store_dwordx4 v[{24+4*it}:{27+4*it}], v61, s[36:39], s41 offen")
lab("k2_end"); e("s_endpgm"); kd("k2s_kernel",80)

kstart("k3b_kernel")
e(f"s_cmp_ge_u32 s2, {B}"); e("s_cbranch_scc1 kb_end")
e("s_load_dwordx2 s[4:5], s[0:1], 80"); e("s_waitcnt lgkmcnt(0)")
srd(8,4,WS_SIZE)
e("s_lshl_b32 s3, s2, 2"); e(f"s_add_u32 s3, s3, {WS_BASE}"); e("s_add_u32 s6, s4, s3"); e("s_addc_u32 s7, s5, 0")
e("s_load_dwordx2 s[12:13], s[6:7], 0")
e("v_lshlrev_b32 v1, 2, v0"); e("v_mov_b32 v2, 0"); e("ds_write_b32 v1, v2")
e("v_mov_b32 v3, 1"); e(f"s_mov_b32 s20, {WS_BSRC}"); e("s_waitcnt lgkmcnt(0)"); e("s_barrier")
e("v_add_u32 v4, s12, v0")
lab("kb_l1")
e("v_cmp_gt_u32 vcc, s13, v4"); e("s_and_saveexec_b64 s[16:17], vcc"); e("s_cbranch_execz kb_l1e")
e("v_lshlrev_b32 v5, 2, v4"); e("buffer_load_dword v6, v5, s[8:11], s20 offen"); e("s_waitcnt vmcnt(0)")
e("v_bfe_u32 v6, v6, 16, 8"); e("v_lshlrev_b32 v6, 2, v6"); e("ds_add_u32 v6, v3")
e("v_add_u32 v4, 1024, v4"); e("s_branch kb_l1")
lab("kb_l1e"); e("s_mov_b64 exec, -1"); e("s_waitcnt lgkmcnt(0)"); e("s_barrier")
e("ds_read_b32 v8, v1"); e("s_waitcnt lgkmcnt(0)"); blockscan(8,16,5120)
e("v_add_u32 v8, s12, v8"); e("v_cmp_gt_u32 vcc, 256, v0"); e("s_and_saveexec_b64 s[16:17], vcc"); e("s_cbranch_execz kb_sk"); e("ds_write_b32 v1, v8 offset:4096")
e("s_lshl_b32 s21, s2, 8"); e("v_add_u32 v9, s21, v0"); e(f"v_cmp_ge_u32 vcc, {N}, v9"); e("s_and_b64 exec, exec, vcc")
e("s_cbranch_execz kb_sk")
e("v_lshlrev_b32 v9, 2, v9"); e(f"s_mov_b32 s20, {WS_NOFF}"); e("buffer_store_dword v8, v9, s[8:11], s20 offen")
lab("kb_sk"); e("s_mov_b64 exec, -1"); e("s_waitcnt lgkmcnt(0)"); e("s_barrier")
e("v_add_u32 v4, s12, v0")
e(f"s_mov_b32 s20, {WS_BSRC}"); e(f"s_mov_b32 s21, {WS_BF}"); e(f"s_mov_b32 s22, {WS_SSRC}"); e(f"s_mov_b32 s23, {WS_SF}")
lab("kb_l2")
e("v_cmp_gt_u32 vcc, s13, v4"); e("s_and_saveexec_b64 s[16:17], vcc"); e("s_cbranch_execz kb_end")
e("v_lshlrev_b32 v5, 2, v4"); e("v_lshlrev_b32 v10, 4, v4")
e("buffer_load_dword v6, v5, s[8:11], s20 offen"); e("buffer_load_dwordx4 v[12:15], v10, s[8:11], s21 offen"); e("s_waitcnt vmcnt(1)")
e("v_bfe_u32 v7, v6, 16, 8"); e("v_lshlrev_b32 v7, 2, v7"); e("ds_add_rtn_u32 v7, v7, v3 offset:4096")
e("v_and_b32 v6, 0xffff, v6"); e("s_waitcnt lgkmcnt(0)")
e("v_lshlrev_b32 v8, 4, v7"); e("v_lshlrev_b32 v7, 2, v7")
e("buffer_store_dword v6, v7, s[8:11], s22 offen"); e("s_waitcnt vmcnt(1)")
e("buffer_store_dwordx4 v[12:15], v8, s[8:11], s23 offen")
e("v_add_u32 v4, 1024, v4"); e("s_branch kb_l2")
lab("kb_end"); e("s_endpgm"); kd("k3b_kernel",24)

D=8
def pk(op,d,s0,s1,s2=None,sel0=None):
    ops=f"v[{d}:{d+1}], {s0}, v[{s1}:{s1+1}]"+(f", v[{s2}:{s2+1}]" if s2 is not None else "")
    n=3 if s2 is not None else 2
    if sel0 is None: e(f"{op} {ops}")
    else:
        lo=[sel0]+[0]*(n-1); hi=[sel0]+[1]*(n-1)
        e(f"{op} {ops} op_sel:[{','.join(map(str,lo))}] op_sel_hi:[{','.join(map(str,hi))}]")
kstart("k4m_kernel")
e("v_lshrrev_b32 v1, 6, v0"); e("s_nop 0"); e("v_readfirstlane_b32 s3, v1")
e("s_lshl_b32 s2, s2, 2"); e("s_mov_b32 s65, s2"); e("s_mov_b32 s64, s3"); e("s_add_u32 s2, s2, s3")
e(f"s_cmp_ge_u32 s2, {N}"); e("s_cbranch_scc1 km_end")
e("s_load_dwordx2 s[66:67], s[0:1], 64"); e("s_load_dwordx2 s[4:5], s[0:1], 0"); e("s_load_dwordx4 s[20:23], s[0:1], 40"); e("s_load_dwordx2 s[6:7], s[0:1], 80"); e("s_waitcnt lgkmcnt(0)")
srd(8,4,N*512); srd(12,6,WS_SIZE); srd(24,20,128); srd(28,22,512); srd(68,66,N*512)
e("s_lshl_b32 s3, s2, 2"); e(f"s_add_u32 s3, s3, {WS_NOFF}"); e("s_add_u32 s16, s6, s3"); e("s_addc_u32 s17, s7, 0")
e("s_load_dwordx2 s[18:19], s[16:17], 0")
e("v_and_b32 v0, 63, v0")
e("v_lshlrev_b32 v1, 2, v0")
e("v_and_b32 v2, 31, v0"); e("v_lshlrev_b32 v2, 2, v2")
for d in range(4): e(f"buffer_load_dword v{32+d}, v2, s[28:31], 0 offen offset:{128*d}")
e("v_lshrrev_b32 v3, 5, v0"); e("v_lshlrev_b32 v3, 5, v3")
for q in range(4): e(f"buffer_load_dwordx4 v[{64+4*q}:{67+4*q}], v3, s[24:27], 0 offen offset:{(q&1)*16+(q>>1)*64}")
e("s_waitcnt vmcnt(4)")
for d in range(4):
    e(f"v_lshlrev_b32 v{16+2*d}, 16, v{32+d}"); e(f"v_and_b32 v{17+2*d}, 0xffff0000, v{32+d}")
for i in range(16): e(f"v_mov_b32 v{32+i}, 0")
e("s_waitcnt lgkmcnt(0)")
e(f"s_mov_b32 s32, {WS_SSRC}"); e(f"s_mov_b32 s33, {WS_SF}")
e("s_mov_b32 s34, s18")
lab("km_batch")
e("s_cmp_ge_u32 s34, s19"); e("s_cbranch_scc1 km_done")
e("s_sub_u32 s35, s19, s34"); e("s_min_u32 s35, s35, 64")
e("s_lshl_b32 s39, s34, 4"); e(f"s_add_u32 s39, s39, {WS_SF}"); e("s_add_u32 s16, s12, s39"); e("s_addc_u32 s17, s13, 0")
e("s_load_dwordx16 s[72:87], s[16:17], 0")
e("v_add_u32 v3, s34, v0"); e("v_lshlrev_b32 v4, 2, v3")
e("v_mov_b32 v8, 0")
e("v_cmp_gt_u32 vcc, s35, v0"); e("s_and_saveexec_b64 s[36:37], vcc")
e("buffer_load_dword v8, v4, s[12:15], s32 offen")
e("s_mov_b64 exec, s[36:37]"); e("s_waitcnt vmcnt(0)")
e("v_lshlrev_b32 v8, 9, v8"); e("v_mov_b32 v9, 0x7f000000"); e("v_cndmask_b32 v8, v9, v8, vcc")
e("s_nop 1")
for i in range(D): e(f"v_readlane_b32 s{40+i}, v8, {i}")
e("s_nop 4")
for i in range(D):
    e(f"buffer_load_dword v{48+2*i}, v1, s[8:11], s{40+i} offen"); e(f"buffer_load_dword v{49+2*i}, v1, s[8:11], s{40+i} offen offset:256")
e("s_mov_b32 s38, 0")
lab("km_loop")
for i in range(D):
    if i==0: e("s_waitcnt lgkmcnt(0)"); e("s_load_dwordx16 s[48:63], s[16:17], 64")
    if i==4: e("s_waitcnt lgkmcnt(0)"); e("s_load_dwordx16 s[72:87], s[16:17], 128")
    fb=(72 if i<4 else 48)+4*(i&3)
    e(f"s_add_u32 s39, s38, {i+D}"); e("s_and_b32 s39, s39, 63"); e(f"v_readlane_b32 s{40+i}, v8, s39")
    for q in range(4):
        dd=(20,22,4,6)[q]
        e(f"s_lshl_b32 s{dd}, s{fb+q}, 16"); e(f"s_and_b32 s{dd+1}, s{fb+q}, 0xffff0000")
    e(f"s_waitcnt vmcnt({2*(D-1)})")
    b=48+2*i
    e(f"v_lshlrev_b32 v24, 16, v{b}"); e(f"v_and_b32 v25, 0xffff0000, v{b}"); e(f"v_lshlrev_b32 v26, 16, v{b+1}"); e(f"v_and_b32 v27, 0xffff0000, v{b+1}")
    e(f"s_add_u32 s39, s38, {i+D}"); e("s_cmp_ge_u32 s39, s35"); e(f"s_cselect_b32 s{40+i}, 0x7f000000, s{40+i}")
    e(f"buffer_load_dword v{b}, v1, s[8:11], s{40+i} offen"); e(f"buffer_load_dword v{b+1}, v1, s[8:11], s{40+i} offen offset:256")
    pk("v_pk_mul_f32",28,"s[4:5]",16,None,0)
    pk("v_pk_fma_f32",28,"s[4:5]",18,28,1)
    pk("v_pk_fma_f32",28,"s[6:7]",20,28,0)
    pk("v_pk_fma_f32",28,"s[6:7]",22,28,1)
    pk("v_pk_mul_f32",24,"v[28:29]",24)
    pk("v_pk_mul_f32",26,"v[28:29]",26)
    for v in range(4):
        for ui in range(2):
            pk("v_pk_fma_f32",32+8*ui+2*v,f"s[{20+(v&2)}:{21+(v&2)}]",24+2*ui,32+8*ui+2*v,v&1)
    if i<D-1:
        e(f"s_add_u32 s39, s38, {i+1}"); e("s_cmp_ge_u32 s39, s35"); e("s_cbranch_scc1 km_bend")
e("s_add_u32 s16, s16, 128"); e("s_addc_u32 s17, s17, 0")
e(f"s_add_u32 s38, s38, {D}"); e("s_cmp_lt_u32 s38, s35"); e("s_cbranch_scc1 km_loop")
lab("km_bend")
e("s_waitcnt vmcnt(0) lgkmcnt(0)")
e("s_add_u32 s34, s34, 64"); e("s_branch km_batch")
lab("km_done")
e("s_waitcnt vmcnt(0)")
first=True
for ui in range(2):
    for v in range(4):
        for wp in range(2):
            src=64+8*ui+2*v+wp
            e(f"v_lshlrev_b32 v{48+2*wp}, 16, v{src}"); e(f"v_and_b32 v{49+2*wp}, 0xffff0000, v{src}")
        for w in range(4):
            t=32+8*ui+2*v
            if first: pk("v_pk_mul_f32",16+2*w,f"v[{48+(w&2)}:{49+(w&2)}]",t,None,w&1)
            else: pk("v_pk_fma_f32",16+2*w,f"v[{48+(w&2)}:{49+(w&2)}]",t,16+2*w,w&1)
        first=False
for r in range(8): e(f"v_mov_b32 v{24+r}, v{16+r}")
e("s_nop 1")
for r in range(8): e(f"v_permlane32_swap_b32 v{16+r}, v{24+r}")
for r in range(8): e(f"v_add_f32 v{16+r}, v{16+r}, v{24+r}")
e("v_cmp_le_u32 vcc, 32, v0"); e("s_nop 1")
for r in range(4): e(f"v_cndmask_b32 v{16+r}, v{16+r}, v{20+r}, vcc")
e("v_cvt_pk_bf16_f32 v20, v16, v17"); e("v_cvt_pk_bf16_f32 v21, v18, v19")
e("v_and_b32 v4, 15, v0"); e("v_lshrrev_b32 v5, 4, v0")
e("v_lshlrev_b32 v6, 7, v4"); e("v_lshl_add_u32 v6, v5, 4, v6")
e("s_lshl_b32 s39, s64, 11"); e(f"s_add_u32 s39, s39, {WS_WT}")
e("buffer_load_dwordx4 v[32:35], v6, s[12:15], s39 offen"); e("buffer_load_dwordx4 v[36:39], v6, s[12:15], s39 offen offset:64")
e("v_lshrrev_b32 v3, 5, v0"); e("v_mul_u32_u24 v3, 288, v3"); e("v_add_u32 v3, v3, v2")
e("s_mul_i32 s39, s64, 576"); e("v_add_u32 v3, s39, v3")
e("ds_write_b32 v3, v20"); e("ds_write_b32 v3, v21 offset:144")
e("s_waitcnt lgkmcnt(0)"); e("s_barrier")
e("v_mul_u32_u24 v7, 144, v4"); e("v_lshl_add_u32 v7, v5, 4, v7")
e("ds_read_b128 v[40:43], v7"); e("ds_read_b128 v[44:47], v7 offset:64")
e("s_waitcnt vmcnt(0) lgkmcnt(0)")
e("v_mfma_f32_16x16x32_bf16 v[48:51], v[32:35], v[40:43], 0")
e("v_mfma_f32_16x16x32_bf16 v[48:51], v[36:39], v[44:47], v[48:51]")
e("v_lshlrev_b32 v6, 7, v4"); e("v_lshl_add_u32 v6, v5, 3, v6")
e("s_lshl_b32 s39, s65, 9"); e("s_lshl_b32 s38, s64, 5"); e("s_add_u32 s39, s39, s38")
e("s_nop 7"); e("s_nop 3")
e("v_cvt_pk_bf16_f32 v52, v48, v49"); e("v_cvt_pk_bf16_f32 v53, v50, v51")
e("buffer_store_dwordx2 v[52:53], v6, s[68:71], s39 offen")
lab("km_end"); e("s_endpgm"); kd("k4m_kernel",80)

hdr=open('gather_scatter__tensor_product_equiv_mace__graph.s.ref').read().split('\n')
hdr=[l for l in hdr if l.startswith(';') and '@launch' not in l]
L=["; @launch kernel=k0z_kernel grid=(1,1,1) block=(256,1,1) lds=0",
"; @launch kernel=k1h_kernel grid=(400,1,1) block=(256,1,1) lds=1024",
"; @launch kernel=k2s_kernel grid=(400,1,1) block=(256,1,1) lds=44288",
f"; @launch kernel=k3b_kernel grid=({B},1,1) block=(1024,1,1) lds=5248",
"; @launch kernel=k4m_kernel grid=(12500,1,1) block=(256,1,1) lds=2304"]
txt="\n".join(hdr+L)+'\n.amdgcn_target "amdgcn-amd-amdhsa--gfx950"\n.text\n'+"\n".join(out)+'\n.section .rodata,"a"\n'+"\n".join(".p2align 6\n"+k for k in kds)+"\n"
open('gather_scatter__tensor_product_equiv_mace__graph.s','w').write(txt)
```

```python
N=50000; E=800000; B=782
WS_CNT=0x0; WS_CUR=0x1000; WS_BASE=0x2000; WS_NOFF=0x4000
WS_BSRC=0x100000; WS_BF=0x500000; WS_SSRC=0x1200000; WS_SF=0x1600000; WS_AGG=0x2400000
WS_SIZE=268435456; WS_WT=0x80000
out=[]
def e(s): out.append("    "+s)
def lab(s): out.append(s+":")
def srd(d, lo, size):
    e(f"s_mov_b32 s{d}, s{lo}"); e(f"s_and_b32 s{d+1}, s{lo+1}, 0xffff"); e(f"s_mov_b32 s{d+2}, {size:#x}"); e(f"s_mov_b32 s{d+3}, 0x00020000")
def kstart(name):
    out.append(f".globl {name}\n.p2align 8\n.type {name},@function\n{name}:")
def scan64(v):
    for sh in (1,2,4,8):
        e("s_nop 1"); e(f"v_add_u32_dpp v{v}, v{v}, v{v} row_shr:{sh} row_mask:0xf bank_mask:0xf bound_ctrl:0")
    e("s_nop 1"); e(f"v_add_u32_dpp v{v}, v{v}, v{v} row_bcast:15 row_mask:0xa bank_mask:0xf")
    e("s_nop 1"); e(f"v_add_u32_dpp v{v}, v{v}, v{v} row_bcast:31 row_mask:0xc bank_mask:0xf")
    e("s_nop 1")
kds=[]
def kd(name, vgpr, sgpr=96):
    kds.append(f""".amdhsa_kernel {name}
  .amdhsa_next_free_vgpr {vgpr}
  .amdhsa_next_free_sgpr {sgpr}
  .amdhsa_accum_offset {(vgpr+3)//4*4}
  .amdhsa_group_segment_fixed_size 0
  .amdhsa_kernarg_size 88
  .amdhsa_user_sgpr_count 2
  .amdhsa_user_sgpr_kernarg_segment_ptr 1
  .amdhsa_system_sgpr_workgroup_id_x 1
.end_amdhsa_kernel""")

kstart("k0z_kernel")
e("s_cmp_ge_u32 s2, 1"); e("s_cbranch_scc1 k0_end")
e("s_load_dwordx2 s[4:5], s[0:1], 80"); e("s_load_dwordx2 s[6:7], s[0:1], 56"); e("s_waitcnt lgkmcnt(0)")
srd(8,4,WS_SIZE); srd(12,6,8192)
e("v_and_b32 v2, 63, v0"); e("v_lshrrev_b32 v3, 6, v0"); e("v_lshlrev_b32 v8, 11, v3"); e("v_lshl_add_u32 v8, v2, 1, v8")
for i in range(16): e(f"buffer_load_ushort v{16+i}, v8, s[12:15], 0 offen offset:{128*i}")
e("v_lshlrev_b32 v9, 7, v2"); e("v_lshl_add_u32 v9, v3, 5, v9"); e("s_waitcnt vmcnt(0)")
for i in range(8): e(f"v_lshl_or_b32 v{32+i}, v{17+2*i}, 16, v{16+2*i}")
e(f"s_mov_b32 s16, {WS_WT}"); e("buffer_store_dwordx4 v[32:35], v9, s[8:11], s16 offen"); e("buffer_store_dwordx4 v[36:39], v9, s[8:11], s16 offen offset:16")
e("v_lshlrev_b32 v1, 5, v0")
for i in range(4): e(f"v_mov_b32 v{4+i}, 0")
e("buffer_store_dwordx4 v[4:7], v1, s[8:11], 0 offen")
e("buffer_store_dwordx4 v[4:7], v1, s[8:11], 0 offen offset:16")
lab("k0_end"); e("s_endpgm"); kd("k0z_kernel",40)

B=196
def blockscan(v, t, wsumoff):
    e(f"v_mov_b32 v{t}, v{v}"); scan64(t)
    e(f"v_lshrrev_b32 v{t+1}, 6, v0"); e(f"v_lshlrev_b32 v{t+1}, 2, v{t+1}")
    e(f"v_and_b32 v{t+2}, 63, v0"); e(f"v_cmp_eq_u32 vcc, 63, v{t+2}"); e("s_and_saveexec_b64 s[16:17], vcc")
    e(f"ds_write_b32 v{t+1}, v{t} offset:{wsumoff}"); e("s_mov_b64 exec, s[16:17]")
    e("s_waitcnt lgkmcnt(0)"); e("s_barrier")
    e(f"v_mov_b32 v{t+1}, 0")
    for k in range(3): e(f"ds_read_b32 v{t+2+k}, v{t+1} offset:{wsumoff+4*k}")
    e("s_waitcnt lgkmcnt(0)")
    e(f"v_sub_u32 v{v}, v{t}, v{v}")
    for k in range(3):
        e(f"v_cmp_le_u32 vcc, {64*(k+1)}, v0"); e("s_nop 1"); e(f"v_cndmask_b32 v{t+2+k}, 0, v{t+2+k}, vcc"); e(f"v_add_u32 v{v}, v{v}, v{t+2+k}")
    e("s_barrier")

kstart("k1h_kernel")
e("s_cmp_ge_u32 s2, 400"); e("s_cbranch_scc1 k1_end")
e("s_load_dwordx2 s[4:5], s[0:1], 16"); e("s_load_dwordx2 s[6:7], s[0:1], 80"); e("s_waitcnt lgkmcnt(0)")
srd(8,4,E*4); srd(12,6,0x2000)
e("v_lshlrev_b32 v1, 2, v0"); e("v_mov_b32 v2, 0"); e("ds_write_b32 v1, v2")
e("s_mul_i32 s3, s2, 8000")
e("v_lshlrev_b32 v6, 5, v0"); e("v_add_u32 v6, s3, v6")
e("v_cmp_gt_u32 vcc, 250, v0"); e("s_waitcnt lgkmcnt(0)"); e("s_barrier")
e("s_and_saveexec_b64 s[16:17], vcc")
e("buffer_load_dwordx4 v[8:11], v6, s[8:11], 0 offen"); e("buffer_load_dwordx4 v[12:15], v6, s[8:11], 0 offen offset:16")
e("v_mov_b32 v7, 1"); e("s_waitcnt vmcnt(0)")
for i in range(8):
    e(f"v_lshrrev_b32 v{8+i}, 8, v{8+i}"); e(f"v_lshlrev_b32 v{8+i}, 2, v{8+i}")
for i in range(8): e(f"ds_add_u32 v{8+i}, v7")
e("s_mov_b64 exec, s[16:17]"); e("s_waitcnt lgkmcnt(0)"); e("s_barrier")
e("ds_read_b32 v2, v1"); e("s_waitcnt lgkmcnt(0)")
e("buffer_atomic_add v2, v1, s[12:15], 0 offen")
lab("k1_end"); e("s_endpgm"); kd("k1h_kernel",16)

L_H=0; L_CUR=1024; L_DL=2048; L_WS=3072; L_IDX=4096; L_F=12288
kstart("k2s_kernel")
e("s_cmp_ge_u32 s2, 400"); e("s_cbranch_scc1 k2_end")
e("s_load_dwordx4 s[4:7], s[0:1], 8"); e("s_load_dwordx4 s[20:23], s[0:1], 24"); e("s_load_dwordx2 s[24:25], s[0:1], 80"); e("s_waitcnt lgkmcnt(0)")
srd(8,4,E*4); srd(12,6,E*4); srd(28,20,E*8); srd(32,22,E*8); srd(36,24,WS_SIZE)
e("v_lshlrev_b32 v1, 2, v0"); e("v_mov_b32 v2, 0"); e(f"ds_write_b32 v1, v2 offset:{L_H}")
e("buffer_load_dword v56, v1, s[36:39], 0 offen")
e("s_mul_i32 s3, s2, 8000")
e("v_lshlrev_b32 v6, 5, v0"); e("v_add_u32 v6, s3, v6"); e("v_lshlrev_b32 v7, 1, v6")
e("v_cmp_gt_u32 vcc, 250, v0"); e("s_and_saveexec_b64 s[18:19], vcc")
e("buffer_load_dwordx4 v[8:11], v6, s[12:15], 0 offen"); e("buffer_load_dwordx4 v[12:15], v6, s[12:15], 0 offen offset:16")
e("buffer_load_dwordx4 v[16:19], v6, s[8:11], 0 offen"); e("buffer_load_dwordx4 v[20:23], v6, s[8:11], 0 offen offset:16")
for i in range(4): e(f"buffer_load_dwordx4 v[{24+4*i}:{27+4*i}], v7, s[28:31], 0 offen offset:{16*i}")
for i in range(4): e(f"buffer_load_dwordx4 v[{40+4*i}:{43+4*i}], v7, s[32:35], 0 offen offset:{16*i}")
e("s_mov_b64 exec, s[18:19]"); e("s_waitcnt vmcnt(0) lgkmcnt(0)"); e("s_barrier")
e("v_mov_b32 v57, v56"); blockscan(57,60,L_WS)
e("s_cmp_lg_u32 s2, 0"); e("s_cbranch_scc1 k2_nobase")
e(f"s_mov_b32 s42, {WS_BASE}"); e("buffer_store_dword v57, v1, s[36:39], s42 offen")
e("v_add_u32 v58, v57, v56"); e("v_cmp_eq_u32 vcc, 255, v0"); e("s_and_saveexec_b64 s[16:17], vcc")
e("buffer_store_dword v58, v1, s[36:39], s42 offen offset:4"); e("s_mov_b64 exec, s[16:17]")
lab("k2_nobase")
e("v_mov_b32 v79, 1")
e("s_mov_b64 exec, s[18:19]"); e("v_cmp_gt_u32 vcc, 250, v0"); e("s_and_saveexec_b64 s[16:17], vcc")
for i in range(8):
    e(f"v_lshrrev_b32 v{68+i}, 8, v{8+i}"); e(f"v_lshlrev_b32 v{68+i}, 2, v{68+i}")
for i in range(8): e(f"ds_add_u32 v{68+i}, v79 offset:{L_H}")
e("s_mov_b64 exec, s[16:17]"); e("s_waitcnt lgkmcnt(0)"); e("s_barrier")
e(f"ds_read_b32 v58, v1 offset:{L_H}"); e("s_waitcnt lgkmcnt(0)")
e("v_mov_b32 v59, v58"); e(f"s_mov_b32 s42, {WS_CUR}")
e("buffer_atomic_add v59, v1, s[36:39], s42 offen sc0")
blockscan(58,60,L_WS)
e("s_waitcnt vmcnt(0)")
e("v_add_u32 v59, v59, v57"); e("v_sub_u32 v59, v59, v58")
e(f"ds_write_b32 v1, v58 offset:{L_CUR}"); e(f"ds_write_b32 v1, v59 offset:{L_DL}"); e("s_waitcnt lgkmcnt(0)"); e("s_barrier")
e("v_cmp_gt_u32 vcc, 250, v0"); e("s_and_saveexec_b64 s[16:17], vcc")
for i in range(8): e(f"ds_add_rtn_u32 v{68+i}, v{68+i}, v79 offset:{L_CUR}")
e("s_waitcnt lgkmcnt(0)")
for i in range(8):
    e(f"v_lshlrev_b32 v{8+i}, 16, v{8+i}"); e(f"v_or_b32 v{8+i}, v{8+i}, v{16+i}")
    e(f"v_lshlrev_b32 v{76}, 2, v{68+i}"); e(f"ds_write_b32 v76, v{8+i} offset:{L_IDX}")
    e(f"v_lshlrev_b32 v{77}, 4, v{68+i}")
    e(f"ds_write_b64 v77, v[{24+2*i}:{25+2*i}] offset:{L_F}"); e(f"ds_write_b64 v77, v[{40+2*i}:{41+2*i}] offset:{L_F+8}")
e("s_mov_b64 exec, s[16:17]"); e("s_waitcnt lgkmcnt(0)"); e("s_barrier")
e(f"s_mov_b32 s40, {WS_BSRC}"); e(f"s_mov_b32 s41, {WS_BF}")
e("v_lshlrev_b32 v2, 4, v0")
for it in range(8):
    if it==7:
        e("v_cmp_gt_u32 vcc, 208, v0"); e("s_and_saveexec_b64 s[16:17], vcc"); e("s_cbranch_execz k2_end")
    e(f"ds_read_b32 v{8+it}, v1 offset:{L_IDX+1024*it}"); e(f"ds_read_b128 v[{24+4*it}:{27+4*it}], v2 offset:{L_F+4096*it}")
    e("s_waitcnt lgkmcnt(1)")
    e(f"v_lshrrev_b32 v60, 24, v{8+it}"); e("v_lshlrev_b32 v60, 2, v60"); e(f"ds_read_b32 v60, v60 offset:{L_DL}")
    e(f"v_and_b32 v{8+it}, 0xffffff, v{8+it}"); e("s_waitcnt lgkmcnt(0)")
    e(f"v_add3_u32 v60, v60, v0, {256*it}" if 256*it<=64 else f"v_add_u32 v60, {256*it}, v60")
    if 256*it>64: e("v_add_u32 v60, v60, v0")
    e("v_lshlrev_b32 v61, 4, v60"); e("v_lshlrev_b32 v60, 2, v60")
    e(f"buffer_store_dword v{8+it}, v60, s[36:39], s40 offen"); e(f"buffer_store_dwordx4 v[{24+4*it}:{27+4*it}], v61, s[36:39], s41 offen")
lab("k2_end"); e("s_endpgm"); kd("k2s_kernel",80)

kstart("k3b_kernel")
e(f"s_cmp_ge_u32 s2, {B}"); e("s_cbranch_scc1 kb_end")
e("s_load_dwordx2 s[4:5], s[0:1], 80"); e("s_waitcnt lgkmcnt(0)")
srd(8,4,WS_SIZE)
e("s_lshl_b32 s3, s2, 2"); e(f"s_add_u32 s3, s3, {WS_BASE}"); e("s_add_u32 s6, s4, s3"); e("s_addc_u32 s7, s5, 0")
e("s_load_dwordx2 s[12:13], s[6:7], 0")
e("v_lshlrev_b32 v1, 2, v0"); e("v_mov_b32 v2, 0"); e("ds_write_b32 v1, v2")
e("v_mov_b32 v3, 1"); e(f"s_mov_b32 s20, {WS_BSRC}"); e("s_waitcnt lgkmcnt(0)"); e("s_barrier")
e("v_add_u32 v4, s12, v0")
lab("kb_l1")
e("v_cmp_gt_u32 vcc, s13, v4"); e("s_and_saveexec_b64 s[16:17], vcc"); e("s_cbranch_execz kb_l1e")
e("v_lshlrev_b32 v5, 2, v4"); e("buffer_load_dword v6, v5, s[8:11], s20 offen"); e("s_waitcnt vmcnt(0)")
e("v_bfe_u32 v6, v6, 16, 8"); e("v_lshlrev_b32 v6, 2, v6"); e("ds_add_u32 v6, v3")
e("v_add_u32 v4, 1024, v4"); e("s_branch kb_l1")
lab("kb_l1e"); e("s_mov_b64 exec, -1"); e("s_waitcnt lgkmcnt(0)"); e("s_barrier")
e("ds_read_b32 v8, v1"); e("s_waitcnt lgkmcnt(0)"); blockscan(8,16,5120)
e("v_add_u32 v8, s12, v8"); e("v_cmp_gt_u32 vcc, 256, v0"); e("s_and_saveexec_b64 s[16:17], vcc"); e("s_cbranch_execz kb_sk"); e("ds_write_b32 v1, v8 offset:4096")
e("s_lshl_b32 s21, s2, 8"); e("v_add_u32 v9, s21, v0"); e(f"v_cmp_ge_u32 vcc, {N}, v9"); e("s_and_b64 exec, exec, vcc")
e("s_cbranch_execz kb_sk")
e("v_lshlrev_b32 v9, 2, v9"); e(f"s_mov_b32 s20, {WS_NOFF}"); e("buffer_store_dword v8, v9, s[8:11], s20 offen")
lab("kb_sk"); e("s_mov_b64 exec, -1"); e("s_waitcnt lgkmcnt(0)"); e("s_barrier")
e("v_add_u32 v4, s12, v0")
e(f"s_mov_b32 s20, {WS_BSRC}"); e(f"s_mov_b32 s21, {WS_BF}"); e(f"s_mov_b32 s22, {WS_SSRC}"); e(f"s_mov_b32 s23, {WS_SF}")
lab("kb_l2")
e("v_cmp_gt_u32 vcc, s13, v4"); e("s_and_saveexec_b64 s[16:17], vcc"); e("s_cbranch_execz kb_end")
e("v_lshlrev_b32 v5, 2, v4"); e("v_lshlrev_b32 v10, 4, v4")
e("buffer_load_dword v6, v5, s[8:11], s20 offen"); e("buffer_load_dwordx4 v[12:15], v10, s[8:11], s21 offen"); e("s_waitcnt vmcnt(1)")
e("v_bfe_u32 v7, v6, 16, 8"); e("v_lshlrev_b32 v7, 2, v7"); e("ds_add_rtn_u32 v7, v7, v3 offset:4096")
e("v_and_b32 v6, 0xffff, v6"); e("s_waitcnt lgkmcnt(0)")
e("v_lshlrev_b32 v8, 4, v7"); e("v_lshlrev_b32 v7, 2, v7")
e("buffer_store_dword v6, v7, s[8:11], s22 offen"); e("s_waitcnt vmcnt(1)")
e("buffer_store_dwordx4 v[12:15], v8, s[8:11], s23 offen")
e("v_add_u32 v4, 1024, v4"); e("s_branch kb_l2")
lab("kb_end"); e("s_endpgm"); kd("k3b_kernel",24)

D=8
def pk(op,d,s0,s1,s2=None,sel0=None):
    ops=f"v[{d}:{d+1}], {s0}, v[{s1}:{s1+1}]"+(f", v[{s2}:{s2+1}]" if s2 is not None else "")
    n=3 if s2 is not None else 2
    if sel0 is None: e(f"{op} {ops}")
    else:
        lo=[sel0]+[0]*(n-1); hi=[sel0]+[1]*(n-1)
        e(f"{op} {ops} op_sel:[{','.join(map(str,lo))}] op_sel_hi:[{','.join(map(str,hi))}]")
kstart("k4m_kernel")
e("v_lshrrev_b32 v1, 6, v0"); e("s_nop 0"); e("v_readfirstlane_b32 s3, v1")
e("s_lshl_b32 s2, s2, 2"); e("s_mov_b32 s65, s2"); e("s_mov_b32 s64, s3"); e("s_add_u32 s2, s2, s3")
e(f"s_cmp_ge_u32 s2, {N}"); e("s_cbranch_scc1 km_end")
e("s_load_dwordx2 s[66:67], s[0:1], 64"); e("s_load_dwordx2 s[4:5], s[0:1], 0"); e("s_load_dwordx4 s[20:23], s[0:1], 40"); e("s_load_dwordx2 s[6:7], s[0:1], 80"); e("s_waitcnt lgkmcnt(0)")
srd(8,4,N*512); srd(12,6,WS_SIZE); srd(24,20,128); srd(28,22,512); srd(68,66,N*512)
e("s_lshl_b32 s3, s2, 2"); e(f"s_add_u32 s3, s3, {WS_NOFF}"); e("s_add_u32 s16, s6, s3"); e("s_addc_u32 s17, s7, 0")
e("s_load_dwordx2 s[18:19], s[16:17], 0")
e("v_and_b32 v0, 63, v0")
e("v_lshlrev_b32 v1, 2, v0")
e("v_and_b32 v2, 31, v0"); e("v_lshlrev_b32 v2, 2, v2")
for d in range(4): e(f"buffer_load_dword v{32+d}, v2, s[28:31], 0 offen offset:{128*d}")
e("v_lshrrev_b32 v3, 5, v0"); e("v_lshlrev_b32 v3, 5, v3")
for q in range(4): e(f"buffer_load_dwordx4 v[{64+4*q}:{67+4*q}], v3, s[24:27], 0 offen offset:{(q&1)*16+(q>>1)*64}")
e("s_waitcnt vmcnt(4)")
for d in range(4):
    e(f"v_lshlrev_b32 v{16+2*d}, 16, v{32+d}"); e(f"v_and_b32 v{17+2*d}, 0xffff0000, v{32+d}")
for i in range(16): e(f"v_mov_b32 v{32+i}, 0")
e("s_waitcnt lgkmcnt(0)")
e(f"s_mov_b32 s32, {WS_SSRC}"); e(f"s_mov_b32 s33, {WS_SF}")
e("s_mov_b32 s34, s18")
lab("km_batch")
e("s_sub_u32 s35, s19, s34"); e("s_cmp_eq_u32 s35, 0"); e("s_cbranch_scc1 km_done")
e("s_lshl_b32 s39, s34, 4"); e(f"s_add_u32 s39, s39, {WS_SF}"); e("s_add_u32 s16, s12, s39"); e("s_addc_u32 s17, s13, 0")
e("s_lshl_b32 s39, s34, 2"); e(f"s_add_u32 s39, s39, {WS_SSRC}"); e("s_add_u32 s96, s12, s39"); e("s_addc_u32 s97, s13, 0")
e("s_load_dwordx8 s[24:31], s[96:97], 0"); e("s_load_dwordx16 s[72:87], s[16:17], 0")
e("s_waitcnt lgkmcnt(0)")
for i in range(D):
    e(f"s_lshl_b32 s{40+i}, s{24+i}, 9"); e(f"s_cmp_le_u32 s35, {i}"); e(f"s_cselect_b32 s{40+i}, 0x7f000000, s{40+i}")
e("s_load_dwordx8 s[24:31], s[96:97], 32")
for i in range(D):
    e(f"buffer_load_dword v{48+2*i}, v1, s[8:11], s{40+i} offen"); e(f"buffer_load_dword v{49+2*i}, v1, s[8:11], s{40+i} offen offset:256")
e("s_mov_b32 s38, 0")
lab("km_loop")
for i in range(D):
    if i==0:
        e("s_waitcnt lgkmcnt(0)")
        for j in range(D):
            e(f"s_lshl_b32 s{88+j}, s{24+j}, 9"); e(f"s_add_u32 s39, s38, {j+D}"); e("s_cmp_ge_u32 s39, s35"); e(f"s_cselect_b32 s{88+j}, 0x7f000000, s{88+j}")
        e("s_load_dwordx8 s[24:31], s[96:97], 64"); e("s_load_dwordx16 s[48:63], s[16:17], 64")
    if i==4: e("s_waitcnt lgkmcnt(0)"); e("s_load_dwordx16 s[72:87], s[16:17], 128")
    fb=(72 if i<4 else 48)+4*(i&3)
    for q in range(4):
        dd=(20,22,4,6)[q]
        e(f"s_lshl_b32 s{dd}, s{fb+q}, 16"); e(f"s_and_b32 s{dd+1}, s{fb+q}, 0xffff0000")
    e(f"s_waitcnt vmcnt({2*(D-1)})")
    b=48+2*i
    e(f"v_lshlrev_b32 v24, 16, v{b}"); e(f"v_and_b32 v25, 0xffff0000, v{b}"); e(f"v_lshlrev_b32 v26, 16, v{b+1}"); e(f"v_and_b32 v27, 0xffff0000, v{b+1}")
    e(f"buffer_load_dword v{b}, v1, s[8:11], s{88+i} offen"); e(f"buffer_load_dword v{b+1}, v1, s[8:11], s{88+i} offen offset:256")
    pk("v_pk_mul_f32",28,"s[4:5]",16,None,0)
    pk("v_pk_fma_f32",28,"s[4:5]",18,28,1)
    pk("v_pk_fma_f32",28,"s[6:7]",20,28,0)
    pk("v_pk_fma_f32",28,"s[6:7]",22,28,1)
    pk("v_pk_mul_f32",24,"v[28:29]",24)
    pk("v_pk_mul_f32",26,"v[28:29]",26)
    for v in range(4):
        for ui in range(2):
            pk("v_pk_fma_f32",32+8*ui+2*v,f"s[{20+(v&2)}:{21+(v&2)}]",24+2*ui,32+8*ui+2*v,v&1)
    if i<D-1:
        e(f"s_add_u32 s39, s38, {i+1}"); e("s_cmp_ge_u32 s39, s35"); e("s_cbranch_scc1 km_bend")
e("s_add_u32 s16, s16, 128"); e("s_addc_u32 s17, s17, 0"); e("s_add_u32 s96, s96, 32"); e("s_addc_u32 s97, s97, 0")
e(f"s_add_u32 s38, s38, {D}"); e("s_cmp_lt_u32 s38, s35"); e("s_cbranch_scc1 km_loop")
lab("km_bend")
e("s_waitcnt vmcnt(0) lgkmcnt(0)")
lab("km_done")
e("s_waitcnt vmcnt(0)")
first=True
for ui in range(2):
    for v in range(4):
        for wp in range(2):
            src=64+8*ui+2*v+wp
            e(f"v_lshlrev_b32 v{48+2*wp}, 16, v{src}"); e(f"v_and_b32 v{49+2*wp}, 0xffff0000, v{src}")
        for w in range(4):
            t=32+8*ui+2*v
            if first: pk("v_pk_mul_f32",16+2*w,f"v[{48+(w&2)}:{49+(w&2)}]",t,None,w&1)
            else: pk("v_pk_fma_f32",16+2*w,f"v[{48+(w&2)}:{49+(w&2)}]",t,16+2*w,w&1)
        first=False
for r in range(8): e(f"v_mov_b32 v{24+r}, v{16+r}")
e("s_nop 1")
for r in range(8): e(f"v_permlane32_swap_b32 v{16+r}, v{24+r}")
for r in range(8): e(f"v_add_f32 v{16+r}, v{16+r}, v{24+r}")
e("v_cmp_le_u32 vcc, 32, v0"); e("s_nop 1")
for r in range(4): e(f"v_cndmask_b32 v{16+r}, v{16+r}, v{20+r}, vcc")
e("v_cvt_pk_bf16_f32 v20, v16, v17"); e("v_cvt_pk_bf16_f32 v21, v18, v19")
e("v_and_b32 v4, 15, v0"); e("v_lshrrev_b32 v5, 4, v0")
e("v_lshlrev_b32 v6, 7, v4"); e("v_lshl_add_u32 v6, v5, 4, v6")
e("s_lshl_b32 s39, s64, 11"); e(f"s_add_u32 s39, s39, {WS_WT}")
e("buffer_load_dwordx4 v[32:35], v6, s[12:15], s39 offen"); e("buffer_load_dwordx4 v[36:39], v6, s[12:15], s39 offen offset:64")
e("v_lshrrev_b32 v3, 5, v0"); e("v_mul_u32_u24 v3, 288, v3"); e("v_add_u32 v3, v3, v2")
e("s_mul_i32 s39, s64, 576"); e("v_add_u32 v3, s39, v3")
e("ds_write_b32 v3, v20"); e("ds_write_b32 v3, v21 offset:144")
e("s_waitcnt lgkmcnt(0)"); e("s_barrier")
e("v_mul_u32_u24 v7, 144, v4"); e("v_lshl_add_u32 v7, v5, 4, v7")
e("ds_read_b128 v[40:43], v7"); e("ds_read_b128 v[44:47], v7 offset:64")
e("s_waitcnt vmcnt(0) lgkmcnt(0)")
e("v_mfma_f32_16x16x32_bf16 v[48:51], v[32:35], v[40:43], 0")
e("v_mfma_f32_16x16x32_bf16 v[48:51], v[36:39], v[44:47], v[48:51]")
e("v_lshlrev_b32 v6, 7, v4"); e("v_lshl_add_u32 v6, v5, 3, v6")
e("s_lshl_b32 s39, s65, 9"); e("s_lshl_b32 s38, s64, 5"); e("s_add_u32 s39, s39, s38")
e("s_nop 7"); e("s_nop 3")
e("v_cvt_pk_bf16_f32 v52, v48, v49"); e("v_cvt_pk_bf16_f32 v53, v50, v51")
e("buffer_store_dwordx2 v[52:53], v6, s[68:71], s39 offen")
lab("km_end"); e("s_endpgm"); kd("k4m_kernel",80,100)

hdr=open('gather_scatter__tensor_product_equiv_mace__graph.s.ref').read().split('\n')
hdr=[l for l in hdr if l.startswith(';') and '@launch' not in l]
L=["; @launch kernel=k0z_kernel grid=(1,1,1) block=(256,1,1) lds=0",
"; @launch kernel=k1h_kernel grid=(400,1,1) block=(256,1,1) lds=1024",
"; @launch kernel=k2s_kernel grid=(400,1,1) block=(256,1,1) lds=44288",
f"; @launch kernel=k3b_kernel grid=({B},1,1) block=(1024,1,1) lds=5248",
"; @launch kernel=k4m_kernel grid=(12500,1,1) block=(256,1,1) lds=2304"]
txt="\n".join(hdr+L)+'\n.amdgcn_target "amdgcn-amd-amdhsa--gfx950"\n.text\n'+"\n".join(out)+'\n.section .rodata,"a"\n'+"\n".join(".p2align 6\n"+k for k in kds)+"\n"
open('gather_scatter__tensor_product_equiv_mace__graph.s','w').write(txt)
```

```python
N=50000; E=800000; B=782
WS_CNT=0x0; WS_CUR=0x1000; WS_BASE=0x2000; WS_NOFF=0x4000
WS_BSRC=0x100000; WS_BF=0x500000; WS_SSRC=0x1200000; WS_SF=0x1600000; WS_AGG=0x2400000
WS_SIZE=268435456; WS_WT=0xF0000; WS_H=0x40000
out=[]
def e(s): out.append("    "+s)
def lab(s): out.append(s+":")
def srd(d, lo, size):
    e(f"s_mov_b32 s{d}, s{lo}"); e(f"s_and_b32 s{d+1}, s{lo+1}, 0xffff"); e(f"s_mov_b32 s{d+2}, {size:#x}"); e(f"s_mov_b32 s{d+3}, 0x00020000")
def kstart(name):
    out.append(f".globl {name}\n.p2align 8\n.type {name},@function\n{name}:")
def scan64(v):
    for sh in (1,2,4,8):
        e("s_nop 1"); e(f"v_add_u32_dpp v{v}, v{v}, v{v} row_shr:{sh} row_mask:0xf bank_mask:0xf bound_ctrl:0")
    e("s_nop 1"); e(f"v_add_u32_dpp v{v}, v{v}, v{v} row_bcast:15 row_mask:0xa bank_mask:0xf")
    e("s_nop 1"); e(f"v_add_u32_dpp v{v}, v{v}, v{v} row_bcast:31 row_mask:0xc bank_mask:0xf")
    e("s_nop 1")
kds=[]
def kd(name, vgpr, sgpr=96):
    kds.append(f""".amdhsa_kernel {name}
  .amdhsa_next_free_vgpr {vgpr}
  .amdhsa_next_free_sgpr {sgpr}
  .amdhsa_accum_offset {(vgpr+3)//4*4}
  .amdhsa_group_segment_fixed_size 0
  .amdhsa_kernarg_size 88
  .amdhsa_user_sgpr_count 2
  .amdhsa_user_sgpr_kernarg_segment_ptr 1
  .amdhsa_system_sgpr_workgroup_id_x 1
.end_amdhsa_kernel""")

B=196
def bscan16(v, t, wsumoff, tot=None):
    e(f"v_mov_b32 v{t}, v{v}"); scan64(t)
    e(f"v_lshrrev_b32 v{t+1}, 6, v0"); e(f"v_lshlrev_b32 v{t+2}, 2, v{t+1}")
    e(f"v_and_b32 v{t+3}, 63, v0"); e(f"v_cmp_eq_u32 vcc, 63, v{t+3}"); e("s_and_saveexec_b64 s[16:17], vcc")
    e(f"ds_write_b32 v{t+2}, v{t} offset:{wsumoff}"); e("s_mov_b64 exec, s[16:17]")
    e("s_waitcnt lgkmcnt(0)"); e("s_barrier")
    e(f"v_mov_b32 v{t+2}, 0")
    for k in range(4): e(f"ds_read_b128 v[{t+4+4*k}:{t+7+4*k}], v{t+2} offset:{wsumoff+16*k}")
    e("s_waitcnt lgkmcnt(0)")
    e(f"v_sub_u32 v{v}, v{t}, v{v}")
    if tot is not None: e(f"v_mov_b32 v{tot}, 0")
    for k in range(NW):
        if tot is not None: e(f"v_add_u32 v{tot}, v{tot}, v{t+4+k}")
        e(f"v_cmp_lt_u32 vcc, {k}, v{t+1}"); e("s_nop 1"); e(f"v_cndmask_b32 v{t+4+k}, 0, v{t+4+k}, vcc"); e(f"v_add_u32 v{v}, v{v}, v{t+4+k}")
    e("s_barrier")

L_H=0; L_CUR=1024; L_WS=3072; L_IDX=4096; L_F=12288
kstart("k2s_kernel")
e("s_cmp_ge_u32 s2, 400"); e("s_cbranch_scc1 k2_end")
e("s_load_dwordx4 s[4:7], s[0:1], 8"); e("s_load_dwordx4 s[20:23], s[0:1], 24"); e("s_load_dwordx2 s[24:25], s[0:1], 80"); e("s_load_dwordx2 s[26:27], s[0:1], 56"); e("s_waitcnt lgkmcnt(0)")
srd(8,4,E*4); srd(12,6,E*4); srd(28,20,E*8); srd(32,22,E*8); srd(36,24,WS_SIZE); srd(44,26,8192)
e("s_cmp_lg_u32 s2, 0"); e("s_cbranch_scc1 k2_notr")
e("v_and_b32 v2, 63, v0"); e("v_lshrrev_b32 v3, 6, v0"); e("v_lshlrev_b32 v8, 11, v3"); e("v_lshl_add_u32 v8, v2, 1, v8")
for i in range(16): e(f"buffer_load_ushort v{16+i}, v8, s[44:47], 0 offen offset:{128*i}")
e("v_lshlrev_b32 v9, 7, v2"); e("v_lshl_add_u32 v9, v3, 5, v9"); e("s_waitcnt vmcnt(0)")
for i in range(8): e(f"v_lshl_or_b32 v{32+i}, v{17+2*i}, 16, v{16+2*i}")
e(f"s_mov_b32 s42, {WS_WT}"); e("buffer_store_dwordx4 v[32:35], v9, s[36:39], s42 offen"); e("buffer_store_dwordx4 v[36:39], v9, s[36:39], s42 offen offset:16")
e("s_waitcnt vmcnt(0)")
lab("k2_notr")
e("v_lshlrev_b32 v1, 2, v0"); e("v_mov_b32 v2, 0"); e(f"ds_write_b32 v1, v2 offset:{L_H}")
e("s_mul_i32 s3, s2, 8000")
e("v_lshlrev_b32 v6, 5, v0"); e("v_add_u32 v6, s3, v6"); e("v_lshlrev_b32 v7, 1, v6")
e("v_cmp_gt_u32 vcc, 250, v0"); e("s_and_saveexec_b64 s[18:19], vcc")
e("buffer_load_dwordx4 v[8:11], v6, s[12:15], 0 offen"); e("buffer_load_dwordx4 v[12:15], v6, s[12:15], 0 offen offset:16")
e("buffer_load_dwordx4 v[16:19], v6, s[8:11], 0 offen"); e("buffer_load_dwordx4 v[20:23], v6, s[8:11], 0 offen offset:16")
for i in range(4): e(f"buffer_load_dwordx4 v[{24+4*i}:{27+4*i}], v7, s[28:31], 0 offen offset:{16*i}")
for i in range(4): e(f"buffer_load_dwordx4 v[{40+4*i}:{43+4*i}], v7, s[32:35], 0 offen offset:{16*i}")
e("s_mov_b64 exec, s[18:19]"); e("s_waitcnt vmcnt(0) lgkmcnt(0)"); e("s_barrier")
e("v_mov_b32 v79, 1")
e("v_cmp_gt_u32 vcc, 250, v0"); e("s_and_saveexec_b64 s[16:17], vcc")
for i in range(8):
    e(f"v_lshrrev_b32 v{68+i}, 8, v{8+i}"); e(f"v_lshlrev_b32 v{68+i}, 2, v{68+i}")
for i in range(8): e(f"ds_add_u32 v{68+i}, v79 offset:{L_H}")
e("s_mov_b64 exec, s[16:17]"); e("s_waitcnt lgkmcnt(0)"); e("s_barrier")
e(f"ds_read_b32 v58, v1 offset:{L_H}"); e("s_waitcnt lgkmcnt(0)")
NW=4
bscan16(58,80,L_WS)
e(f"ds_write_b32 v1, v58 offset:{L_CUR}")
e("s_movk_i32 s42, 1600"); e("v_mul_lo_u32 v59, s42, v0"); e("s_lshl_b32 s42, s2, 2"); e(f"s_add_u32 s42, s42, {WS_H}")
e("buffer_store_dword v58, v59, s[36:39], s42 offen")
e("s_waitcnt lgkmcnt(0)"); e("s_barrier")
e("v_cmp_gt_u32 vcc, 250, v0"); e("s_and_saveexec_b64 s[16:17], vcc")
for i in range(8): e(f"ds_add_rtn_u32 v{68+i}, v{68+i}, v79 offset:{L_CUR}")
e("s_waitcnt lgkmcnt(0)")
for i in range(8):
    e(f"v_lshlrev_b32 v{8+i}, 16, v{8+i}"); e(f"v_or_b32 v{8+i}, v{8+i}, v{16+i}")
    e(f"v_lshlrev_b32 v76, 2, v{68+i}"); e(f"ds_write_b32 v76, v{8+i} offset:{L_IDX}")
    e(f"v_lshlrev_b32 v77, 4, v{68+i}")
    e(f"ds_write_b64 v77, v[{24+2*i}:{25+2*i}] offset:{L_F}"); e(f"ds_write_b64 v77, v[{40+2*i}:{41+2*i}] offset:{L_F+8}")
e("s_mov_b64 exec, s[16:17]"); e("s_waitcnt lgkmcnt(0)"); e("s_barrier")
e(f"s_add_u32 s40, s3, {WS_BSRC}"); e("s_lshl_b32 s41, s3, 2"); e(f"s_add_u32 s41, s41, {WS_BF}")
e("v_lshlrev_b32 v2, 4, v0")
for it in range(8):
    if it==7:
        e("v_cmp_gt_u32 vcc, 208, v0"); e("s_and_saveexec_b64 s[16:17], vcc"); e("s_cbranch_execz k2_end")
    e(f"ds_read_b32 v{8+it}, v1 offset:{L_IDX+1024*it}"); e(f"ds_read_b128 v[{24+4*it}:{27+4*it}], v2 offset:{L_F+4096*it}")
    e("s_waitcnt lgkmcnt(0)")
    e(f"buffer_store_dword v{8+it}, v1, s[36:39], s40 offen offset:{1024*it if it<4 else 0}" if it<4 else f"s_nop 0")
    if it>=4:
        e(f"v_add_u32 v60, {1024*it}, v1"); e(f"buffer_store_dword v{8+it}, v60, s[36:39], s40 offen")
    e(f"v_add_u32 v61, {4096*it}, v2"); e(f"buffer_store_dwordx4 v[{24+4*it}:{27+4*it}], v61, s[36:39], s41 offen")
lab("k2_end"); e("s_endpgm"); kd("k2s_kernel",104)

LB_CUR=4096; LB_WS=5120; LB_RO=6144; LB_TAB=8192
def search():
    e("v_mov_b32 v5, 0")
    for st in (256,128,64,32,16,8,4,2,1):
        e(f"v_add_u32 v6, {st}, v5"); e("v_lshlrev_b32 v7, 2, v6"); e(f"ds_read_b32 v7, v7 offset:{LB_RO}"); e("s_waitcnt lgkmcnt(0)")
        e("v_cmp_le_u32 vcc, v7, v4"); e("s_nop 1"); e("v_cndmask_b32 v5, v5, v6, vcc")
    e("v_lshlrev_b32 v5, 2, v5"); e(f"ds_read_b32 v5, v5 offset:{LB_TAB}"); e("s_waitcnt lgkmcnt(0)"); e("v_add_u32 v5, v5, v4")
kstart("k3b_kernel")
e(f"s_cmp_ge_u32 s2, {B}"); e("s_cbranch_scc1 kb_end")
e("s_load_dwordx2 s[4:5], s[0:1], 80"); e("s_waitcnt lgkmcnt(0)")
srd(8,4,WS_SIZE)
e("v_lshlrev_b32 v1, 2, v0"); e("v_mov_b32 v2, 0"); e("ds_write_b32 v1, v2")
e("v_mov_b32 v3, 1"); e("v_mov_b32 v10, 0"); e("v_mov_b32 v11, 0")
e("s_mul_i32 s20, s2, 1600"); e(f"s_add_u32 s20, s20, {WS_H}"); e("s_add_u32 s21, s20, 1600")
e("v_cmp_gt_u32 vcc, 400, v0"); e("s_and_saveexec_b64 s[18:19], vcc"); e("s_cbranch_execz kb_nh")
e("buffer_load_dword v10, v1, s[8:11], s20 offen"); e("buffer_load_dword v11, v1, s[8:11], s21 offen"); e("s_waitcnt vmcnt(0)")
lab("kb_nh"); e("s_mov_b64 exec, s[18:19]")
e("v_sub_u32 v11, v11, v10")
NW=16
e("v_mov_b32 v12, v10"); bscan16(12,20,LB_WS,13)
bscan16(11,20,LB_WS,14)
e("v_mul_u32_u24 v15, 2000, v0"); e("v_add_u32 v15, v15, v10"); e("v_sub_u32 v15, v15, v11")
e("v_cmp_gt_u32 vcc, 400, v0"); e("s_nop 1"); e("v_cndmask_b32 v11, -1, v11, vcc")
e("v_cmp_gt_u32 vcc, 512, v0"); e("s_and_saveexec_b64 s[18:19], vcc")
e(f"ds_write_b32 v1, v11 offset:{LB_RO}"); e(f"ds_write_b32 v1, v15 offset:{LB_TAB}")
e("s_mov_b64 exec, s[18:19]")
e("v_readfirstlane_b32 s12, v13"); e("v_readfirstlane_b32 s13, v14")
e(f"s_mov_b32 s20, {WS_BSRC}"); e("s_waitcnt lgkmcnt(0)"); e("s_barrier")
e("v_mov_b32 v4, v0")
lab("kb_l1")
e("v_cmp_gt_u32 vcc, s13, v4"); e("s_and_saveexec_b64 s[16:17], vcc"); e("s_cbranch_execz kb_l1e")
search()
e("v_lshlrev_b32 v5, 2, v5"); e("buffer_load_dword v6, v5, s[8:11], s20 offen"); e("s_waitcnt vmcnt(0)")
e("v_bfe_u32 v6, v6, 16, 8"); e("v_lshlrev_b32 v6, 2, v6"); e("ds_add_u32 v6, v3")
e("v_add_u32 v4, 1024, v4"); e("s_branch kb_l1")
lab("kb_l1e"); e("s_mov_b64 exec, -1"); e("s_waitcnt lgkmcnt(0)"); e("s_barrier")
e("ds_read_b32 v8, v1"); e("s_waitcnt lgkmcnt(0)"); bscan16(8,20,LB_WS)
e("v_add_u32 v8, s12, v8"); e("v_cmp_gt_u32 vcc, 256, v0"); e("s_and_saveexec_b64 s[16:17], vcc"); e("s_cbranch_execz kb_sk"); e(f"ds_write_b32 v1, v8 offset:{LB_CUR}")
e("s_lshl_b32 s21, s2, 8"); e("v_add_u32 v9, s21, v0"); e(f"v_cmp_ge_u32 vcc, {N}, v9"); e("s_and_b64 exec, exec, vcc")
e("s_cbranch_execz kb_sk")
e("v_lshlrev_b32 v9, 2, v9"); e(f"s_mov_b32 s20, {WS_NOFF}"); e("buffer_store_dword v8, v9, s[8:11], s20 offen")
lab("kb_sk"); e("s_mov_b64 exec, -1"); e("s_waitcnt lgkmcnt(0)"); e("s_barrier")
e("v_mov_b32 v4, v0")
e(f"s_mov_b32 s20, {WS_BSRC}"); e(f"s_mov_b32 s21, {WS_BF}"); e(f"s_mov_b32 s22, {WS_SSRC}"); e(f"s_mov_b32 s23, {WS_SF}")
lab("kb_l2")
e("v_cmp_gt_u32 vcc, s13, v4"); e("s_and_saveexec_b64 s[16:17], vcc"); e("s_cbranch_execz kb_end")
search()
e("v_lshlrev_b32 v10, 4, v5"); e("v_lshlrev_b32 v5, 2, v5")
e("buffer_load_dword v6, v5, s[8:11], s20 offen"); e("buffer_load_dwordx4 v[12:15], v10, s[8:11], s21 offen"); e("s_waitcnt vmcnt(1)")
e("v_bfe_u32 v7, v6, 16, 8"); e("v_lshlrev_b32 v7, 2, v7"); e(f"ds_add_rtn_u32 v7, v7, v3 offset:{LB_CUR}")
e("v_and_b32 v6, 0xffff, v6"); e("s_waitcnt lgkmcnt(0)")
e("v_lshlrev_b32 v8, 4, v7"); e("v_lshlrev_b32 v7, 2, v7")
e("buffer_store_dword v6, v7, s[8:11], s22 offen"); e("s_waitcnt vmcnt(1)")
e("buffer_store_dwordx4 v[12:15], v8, s[8:11], s23 offen")
e("v_add_u32 v4, 1024, v4"); e("s_branch kb_l2")
lab("kb_end"); e("s_endpgm"); kd("k3b_kernel",44)

D=8
def pk(op,d,s0,s1,s2=None,sel0=None):
    ops=f"v[{d}:{d+1}], {s0}, v[{s1}:{s1+1}]"+(f", v[{s2}:{s2+1}]" if s2 is not None else "")
    n=3 if s2 is not None else 2
    if sel0 is None: e(f"{op} {ops}")
    else:
        lo=[sel0]+[0]*(n-1); hi=[sel0]+[1]*(n-1)
        e(f"{op} {ops} op_sel:[{','.join(map(str,lo))}] op_sel_hi:[{','.join(map(str,hi))}]")
kstart("k4m_kernel")
e("v_lshrrev_b32 v1, 6, v0"); e("s_nop 0"); e("v_readfirstlane_b32 s3, v1")
e("s_lshl_b32 s2, s2, 2"); e("s_mov_b32 s65, s2"); e("s_mov_b32 s64, s3"); e("s_add_u32 s2, s2, s3")
e(f"s_cmp_ge_u32 s2, {N}"); e("s_cbranch_scc1 km_end")
e("s_load_dwordx2 s[66:67], s[0:1], 64"); e("s_load_dwordx2 s[4:5], s[0:1], 0"); e("s_load_dwordx4 s[20:23], s[0:1], 40"); e("s_load_dwordx2 s[6:7], s[0:1], 80"); e("s_waitcnt lgkmcnt(0)")
srd(8,4,N*512); srd(12,6,WS_SIZE); srd(24,20,128); srd(28,22,512); srd(68,66,N*512)
e("s_lshl_b32 s3, s2, 2"); e(f"s_add_u32 s3, s3, {WS_NOFF}"); e("s_add_u32 s16, s6, s3"); e("s_addc_u32 s17, s7, 0")
e("s_load_dwordx2 s[18:19], s[16:17], 0")
e("v_and_b32 v0, 63, v0")
e("v_lshlrev_b32 v1, 2, v0")
e("v_and_b32 v2, 31, v0"); e("v_lshlrev_b32 v2, 2, v2")
for d in range(4): e(f"buffer_load_dword v{32+d}, v2, s[28:31], 0 offen offset:{128*d}")
e("v_lshrrev_b32 v3, 5, v0"); e("v_lshlrev_b32 v3, 5, v3")
for q in range(4): e(f"buffer_load_dwordx4 v[{64+4*q}:{67+4*q}], v3, s[24:27], 0 offen offset:{(q&1)*16+(q>>1)*64}")
e("s_waitcnt vmcnt(4)")
for d in range(4):
    e(f"v_lshlrev_b32 v{16+2*d}, 16, v{32+d}"); e(f"v_and_b32 v{17+2*d}, 0xffff0000, v{32+d}")
for i in range(16): e(f"v_mov_b32 v{32+i}, 0")
e("s_waitcnt lgkmcnt(0)")
e(f"s_mov_b32 s32, {WS_SSRC}"); e(f"s_mov_b32 s33, {WS_SF}")
e("s_mov_b32 s34, s18")
lab("km_batch")
e("s_sub_u32 s35, s19, s34"); e("s_cmp_eq_u32 s35, 0"); e("s_cbranch_scc1 km_done")
e("s_lshl_b32 s39, s34, 4"); e(f"s_add_u32 s39, s39, {WS_SF}"); e("s_add_u32 s16, s12, s39"); e("s_addc_u32 s17, s13, 0")
e("s_lshl_b32 s39, s34, 2"); e(f"s_add_u32 s39, s39, {WS_SSRC}"); e("s_add_u32 s96, s12, s39"); e("s_addc_u32 s97, s13, 0")
e("s_load_dwordx8 s[24:31], s[96:97], 0"); e("s_load_dwordx16 s[72:87], s[16:17], 0")
e("s_waitcnt lgkmcnt(0)")
for i in range(D):
    e(f"s_lshl_b32 s{40+i}, s{24+i}, 9"); e(f"s_cmp_le_u32 s35, {i}"); e(f"s_cselect_b32 s{40+i}, 0x7f000000, s{40+i}")
e("s_load_dwordx8 s[24:31], s[96:97], 32")
for i in range(D):
    e(f"buffer_load_dword v{48+2*i}, v1, s[8:11], s{40+i} offen"); e(f"buffer_load_dword v{49+2*i}, v1, s[8:11], s{40+i} offen offset:256")
e("s_mov_b32 s38, 0")
lab("km_loop")
for i in range(D):
    if i==0:
        e("s_waitcnt lgkmcnt(0)")
        for j in range(D):
            e(f"s_lshl_b32 s{88+j}, s{24+j}, 9"); e(f"s_add_u32 s39, s38, {j+D}"); e("s_cmp_ge_u32 s39, s35"); e(f"s_cselect_b32 s{88+j}, 0x7f000000, s{88+j}")
        e("s_load_dwordx8 s[24:31], s[96:97], 64"); e("s_load_dwordx16 s[48:63], s[16:17], 64")
    if i==4: e("s_waitcnt lgkmcnt(0)"); e("s_load_dwordx16 s[72:87], s[16:17], 128")
    fb=(72 if i<4 else 48)+4*(i&3)
    for q in range(4):
        dd=(20,22,4,6)[q]
        e(f"s_lshl_b32 s{dd}, s{fb+q}, 16"); e(f"s_and_b32 s{dd+1}, s{fb+q}, 0xffff0000")
    e(f"s_waitcnt vmcnt({2*(D-1)})")
    b=48+2*i
    e(f"v_lshlrev_b32 v24, 16, v{b}"); e(f"v_and_b32 v25, 0xffff0000, v{b}"); e(f"v_lshlrev_b32 v26, 16, v{b+1}"); e(f"v_and_b32 v27, 0xffff0000, v{b+1}")
    e(f"buffer_load_dword v{b}, v1, s[8:11], s{88+i} offen"); e(f"buffer_load_dword v{b+1}, v1, s[8:11], s{88+i} offen offset:256")
    pk("v_pk_mul_f32",28,"s[4:5]",16,None,0)
    pk("v_pk_fma_f32",28,"s[4:5]",18,28,1)
    pk("v_pk_fma_f32",28,"s[6:7]",20,28,0)
    pk("v_pk_fma_f32",28,"s[6:7]",22,28,1)
    pk("v_pk_mul_f32",24,"v[28:29]",24)
    pk("v_pk_mul_f32",26,"v[28:29]",26)
    for v in range(4):
        for ui in range(2):
            pk("v_pk_fma_f32",32+8*ui+2*v,f"s[{20+(v&2)}:{21+(v&2)}]",24+2*ui,32+8*ui+2*v,v&1)
    if i<D-1:
        e(f"s_add_u32 s39, s38, {i+1}"); e("s_cmp_ge_u32 s39, s35"); e("s_cbranch_scc1 km_bend")
e("s_add_u32 s16, s16, 128"); e("s_addc_u32 s17, s17, 0"); e("s_add_u32 s96, s96, 32"); e("s_addc_u32 s97, s97, 0")
e(f"s_add_u32 s38, s38, {D}"); e("s_cmp_lt_u32 s38, s35"); e("s_cbranch_scc1 km_loop")
lab("km_bend")
e("s_waitcnt vmcnt(0) lgkmcnt(0)")
lab("km_done")
e("s_waitcnt vmcnt(0)")
first=True
for ui in range(2):
    for v in range(4):
        for wp in range(2):
            src=64+8*ui+2*v+wp
            e(f"v_lshlrev_b32 v{48+2*wp}, 16, v{src}"); e(f"v_and_b32 v{49+2*wp}, 0xffff0000, v{src}")
        for w in range(4):
            t=32+8*ui+2*v
            if first: pk("v_pk_mul_f32",16+2*w,f"v[{48+(w&2)}:{49+(w&2)}]",t,None,w&1)
            else: pk("v_pk_fma_f32",16+2*w,f"v[{48+(w&2)}:{49+(w&2)}]",t,16+2*w,w&1)
        first=False
for r in range(8): e(f"v_mov_b32 v{24+r}, v{16+r}")
e("s_nop 1")
for r in range(8): e(f"v_permlane32_swap_b32 v{16+r}, v{24+r}")
for r in range(8): e(f"v_add_f32 v{16+r}, v{16+r}, v{24+r}")
e("v_cmp_le_u32 vcc, 32, v0"); e("s_nop 1")
for r in range(4): e(f"v_cndmask_b32 v{16+r}, v{16+r}, v{20+r}, vcc")
e("v_cvt_pk_bf16_f32 v20, v16, v17"); e("v_cvt_pk_bf16_f32 v21, v18, v19")
e("v_and_b32 v4, 15, v0"); e("v_lshrrev_b32 v5, 4, v0")
e("v_lshlrev_b32 v6, 7, v4"); e("v_lshl_add_u32 v6, v5, 4, v6")
e("s_lshl_b32 s39, s64, 11"); e(f"s_add_u32 s39, s39, {WS_WT}")
e("buffer_load_dwordx4 v[32:35], v6, s[12:15], s39 offen"); e("buffer_load_dwordx4 v[36:39], v6, s[12:15], s39 offen offset:64")
e("v_lshrrev_b32 v3, 5, v0"); e("v_mul_u32_u24 v3, 288, v3"); e("v_add_u32 v3, v3, v2")
e("s_mul_i32 s39, s64, 576"); e("v_add_u32 v3, s39, v3")
e("ds_write_b32 v3, v20"); e("ds_write_b32 v3, v21 offset:144")
e("s_waitcnt lgkmcnt(0)"); e("s_barrier")
e("v_mul_u32_u24 v7, 144, v4"); e("v_lshl_add_u32 v7, v5, 4, v7")
e("ds_read_b128 v[40:43], v7"); e("ds_read_b128 v[44:47], v7 offset:64")
e("s_waitcnt vmcnt(0) lgkmcnt(0)")
e("v_mfma_f32_16x16x32_bf16 v[48:51], v[32:35], v[40:43], 0")
e("v_mfma_f32_16x16x32_bf16 v[48:51], v[36:39], v[44:47], v[48:51]")
e("v_lshlrev_b32 v6, 7, v4"); e("v_lshl_add_u32 v6, v5, 3, v6")
e("s_lshl_b32 s39, s65, 9"); e("s_lshl_b32 s38, s64, 5"); e("s_add_u32 s39, s39, s38")
e("s_nop 7"); e("s_nop 3")
e("v_cvt_pk_bf16_f32 v52, v48, v49"); e("v_cvt_pk_bf16_f32 v53, v50, v51")
e("buffer_store_dwordx2 v[52:53], v6, s[68:71], s39 offen")
lab("km_end"); e("s_endpgm"); kd("k4m_kernel",80,100)

hdr=open('gather_scatter__tensor_product_equiv_mace__graph.s.ref').read().split('\n')
hdr=[l for l in hdr if l.startswith(';') and '@launch' not in l]
L=["; @launch kernel=k2s_kernel grid=(400,1,1) block=(256,1,1) lds=44288",
f"; @launch kernel=k3b_kernel grid=({B},1,1) block=(1024,1,1) lds=10240",
"; @launch kernel=k4m_kernel grid=(12500,1,1) block=(256,1,1) lds=2304"]
txt="\n".join(hdr+L)+'\n.amdgcn_target "amdgcn-amd-amdhsa--gfx950"\n.text\n'+"\n".join(out)+'\n.section .rodata,"a"\n'+"\n".join(".p2align 6\n"+k for k in kds)+"\n"
open('gather_scatter__tensor_product_equiv_mace__graph.s','w').write(txt)
```

```python
N=50000; E=800000; B=782
WS_CNT=0x0; WS_CUR=0x1000; WS_BASE=0x2000; WS_NOFF=0x4000
WS_BSRC=0x100000; WS_BF=0x500000; WS_SSRC=0x1200000; WS_SF=0x1600000; WS_AGG=0x2400000
WS_SIZE=268435456; WS_WT=0xF0000; WS_H=0x40000
out=[]
def e(s): out.append("    "+s)
def lab(s): out.append(s+":")
def srd(d, lo, size):
    e(f"s_mov_b32 s{d}, s{lo}"); e(f"s_and_b32 s{d+1}, s{lo+1}, 0xffff"); e(f"s_mov_b32 s{d+2}, {size:#x}"); e(f"s_mov_b32 s{d+3}, 0x00020000")
def kstart(name):
    out.append(f".globl {name}\n.p2align 8\n.type {name},@function\n{name}:")
def scan64(v):
    for sh in (1,2,4,8):
        e("s_nop 1"); e(f"v_add_u32_dpp v{v}, v{v}, v{v} row_shr:{sh} row_mask:0xf bank_mask:0xf bound_ctrl:0")
    e("s_nop 1"); e(f"v_add_u32_dpp v{v}, v{v}, v{v} row_bcast:15 row_mask:0xa bank_mask:0xf")
    e("s_nop 1"); e(f"v_add_u32_dpp v{v}, v{v}, v{v} row_bcast:31 row_mask:0xc bank_mask:0xf")
    e("s_nop 1")
kds=[]
def kd(name, vgpr, sgpr=96):
    kds.append(f""".amdhsa_kernel {name}
  .amdhsa_next_free_vgpr {vgpr}
  .amdhsa_next_free_sgpr {sgpr}
  .amdhsa_accum_offset {(vgpr+3)//4*4}
  .amdhsa_group_segment_fixed_size 0
  .amdhsa_kernarg_size 88
  .amdhsa_user_sgpr_count 2
  .amdhsa_user_sgpr_kernarg_segment_ptr 1
  .amdhsa_system_sgpr_workgroup_id_x 1
.end_amdhsa_kernel""")

B=196
def bscan16(v, t, wsumoff, tot=None):
    e(f"v_mov_b32 v{t}, v{v}"); scan64(t)
    e(f"v_lshrrev_b32 v{t+1}, 6, v0"); e(f"v_lshlrev_b32 v{t+2}, 2, v{t+1}")
    e(f"v_and_b32 v{t+3}, 63, v0"); e(f"v_cmp_eq_u32 vcc, 63, v{t+3}"); e("s_and_saveexec_b64 s[16:17], vcc")
    e(f"ds_write_b32 v{t+2}, v{t} offset:{wsumoff}"); e("s_mov_b64 exec, s[16:17]")
    e("s_waitcnt lgkmcnt(0)"); e("s_barrier")
    e(f"v_mov_b32 v{t+2}, 0")
    for k in range(4): e(f"ds_read_b128 v[{t+4+4*k}:{t+7+4*k}], v{t+2} offset:{wsumoff+16*k}")
    e("s_waitcnt lgkmcnt(0)")
    e(f"v_sub_u32 v{v}, v{t}, v{v}")
    if tot is not None: e(f"v_mov_b32 v{tot}, 0")
    for k in range(NW):
        if tot is not None: e(f"v_add_u32 v{tot}, v{tot}, v{t+4+k}")
        e(f"v_cmp_lt_u32 vcc, {k}, v{t+1}"); e("s_nop 1"); e(f"v_cndmask_b32 v{t+4+k}, 0, v{t+4+k}, vcc"); e(f"v_add_u32 v{v}, v{v}, v{t+4+k}")
    e("s_barrier")

L_H=0; L_CUR=1024; L_WS=3072; L_IDX=4096; L_F=12288
kstart("k2s_kernel")
e("s_cmp_ge_u32 s2, 400"); e("s_cbranch_scc1 k2_end")
e("s_load_dwordx4 s[4:7], s[0:1], 8"); e("s_load_dwordx4 s[20:23], s[0:1], 24"); e("s_load_dwordx2 s[24:25], s[0:1], 80"); e("s_load_dwordx2 s[26:27], s[0:1], 56"); e("s_waitcnt lgkmcnt(0)")
srd(8,4,E*4); srd(12,6,E*4); srd(28,20,E*8); srd(32,22,E*8); srd(36,24,WS_SIZE); srd(44,26,8192)
e("s_cmp_lg_u32 s2, 0"); e("s_cbranch_scc1 k2_notr")
e("v_and_b32 v2, 63, v0"); e("v_lshrrev_b32 v3, 6, v0"); e("v_lshlrev_b32 v8, 11, v3"); e("v_lshl_add_u32 v8, v2, 1, v8")
for i in range(16): e(f"buffer_load_ushort v{16+i}, v8, s[44:47], 0 offen offset:{128*i}")
e("v_lshlrev_b32 v9, 7, v2"); e("v_lshl_add_u32 v9, v3, 5, v9"); e("s_waitcnt vmcnt(0)")
for i in range(8): e(f"v_lshl_or_b32 v{32+i}, v{17+2*i}, 16, v{16+2*i}")
e(f"s_mov_b32 s42, {WS_WT}"); e("buffer_store_dwordx4 v[32:35], v9, s[36:39], s42 offen"); e("buffer_store_dwordx4 v[36:39], v9, s[36:39], s42 offen offset:16")
e("s_waitcnt vmcnt(0)")
lab("k2_notr")
e("v_lshlrev_b32 v1, 2, v0"); e("v_mov_b32 v2, 0"); e(f"ds_write_b32 v1, v2 offset:{L_H}")
e("s_mul_i32 s3, s2, 8000")
e("v_lshlrev_b32 v6, 5, v0"); e("v_add_u32 v6, s3, v6"); e("v_lshlrev_b32 v7, 1, v6")
e("v_cmp_gt_u32 vcc, 250, v0"); e("s_and_saveexec_b64 s[18:19], vcc")
e("buffer_load_dwordx4 v[8:11], v6, s[12:15], 0 offen"); e("buffer_load_dwordx4 v[12:15], v6, s[12:15], 0 offen offset:16")
e("buffer_load_dwordx4 v[16:19], v6, s[8:11], 0 offen"); e("buffer_load_dwordx4 v[20:23], v6, s[8:11], 0 offen offset:16")
for i in range(4): e(f"buffer_load_dwordx4 v[{24+4*i}:{27+4*i}], v7, s[28:31], 0 offen offset:{16*i}")
for i in range(4): e(f"buffer_load_dwordx4 v[{40+4*i}:{43+4*i}], v7, s[32:35], 0 offen offset:{16*i}")
e("s_mov_b64 exec, s[18:19]"); e("s_waitcnt vmcnt(0) lgkmcnt(0)"); e("s_barrier")
e("v_mov_b32 v79, 1")
e("v_cmp_gt_u32 vcc, 250, v0"); e("s_and_saveexec_b64 s[16:17], vcc")
for i in range(8):
    e(f"v_lshrrev_b32 v{68+i}, 8, v{8+i}"); e(f"v_lshlrev_b32 v{68+i}, 2, v{68+i}")
for i in range(8): e(f"ds_add_u32 v{68+i}, v79 offset:{L_H}")
e("s_mov_b64 exec, s[16:17]"); e("s_waitcnt lgkmcnt(0)"); e("s_barrier")
e(f"ds_read_b32 v58, v1 offset:{L_H}"); e("s_waitcnt lgkmcnt(0)")
NW=4
bscan16(58,80,L_WS)
e(f"ds_write_b32 v1, v58 offset:{L_CUR}")
e("s_movk_i32 s42, 1600"); e("v_mul_lo_u32 v59, s42, v0"); e("s_lshl_b32 s42, s2, 2"); e(f"s_add_u32 s42, s42, {WS_H}")
e("buffer_store_dword v58, v59, s[36:39], s42 offen")
e("s_waitcnt lgkmcnt(0)"); e("s_barrier")
e("v_cmp_gt_u32 vcc, 250, v0"); e("s_and_saveexec_b64 s[16:17], vcc")
for i in range(8): e(f"ds_add_rtn_u32 v{68+i}, v{68+i}, v79 offset:{L_CUR}")
e("s_waitcnt lgkmcnt(0)")
for i in range(8):
    e(f"v_lshlrev_b32 v{8+i}, 16, v{8+i}"); e(f"v_or_b32 v{8+i}, v{8+i}, v{16+i}")
    e(f"v_lshlrev_b32 v76, 2, v{68+i}"); e(f"ds_write_b32 v76, v{8+i} offset:{L_IDX}")
    e(f"v_lshlrev_b32 v77, 4, v{68+i}")
    e(f"ds_write_b64 v77, v[{24+2*i}:{25+2*i}] offset:{L_F}"); e(f"ds_write_b64 v77, v[{40+2*i}:{41+2*i}] offset:{L_F+8}")
e("s_mov_b64 exec, s[16:17]"); e("s_waitcnt lgkmcnt(0)"); e("s_barrier")
e(f"s_add_u32 s40, s3, {WS_BSRC}"); e("s_lshl_b32 s41, s3, 2"); e(f"s_add_u32 s41, s41, {WS_BF}")
e("v_lshlrev_b32 v2, 4, v0")
for it in range(8):
    if it==7:
        e("v_cmp_gt_u32 vcc, 208, v0"); e("s_and_saveexec_b64 s[16:17], vcc"); e("s_cbranch_execz k2_end")
    e(f"ds_read_b32 v{8+it}, v1 offset:{L_IDX+1024*it}"); e(f"ds_read_b128 v[{24+4*it}:{27+4*it}], v2 offset:{L_F+4096*it}")
    e("s_waitcnt lgkmcnt(0)")
    e(f"buffer_store_dword v{8+it}, v1, s[36:39], s40 offen offset:{1024*it if it<4 else 0}" if it<4 else f"s_nop 0")
    if it>=4:
        e(f"v_add_u32 v60, {1024*it}, v1"); e(f"buffer_store_dword v{8+it}, v60, s[36:39], s40 offen")
    e(f"v_add_u32 v61, {4096*it}, v2"); e(f"buffer_store_dwordx4 v[{24+4*it}:{27+4*it}], v61, s[36:39], s41 offen")
lab("k2_end"); e("s_endpgm"); kd("k2s_kernel",104)

LB_CUR=4096; LB_WS=5120; LB_RO=6144; LB_TAB=8192
def search4():
    for q in range(4): e(f"v_mov_b32 v{48+q}, 0")
    for st in (256,128,64,32,16,8,4,2,1):
        for q in range(4):
            e(f"v_add_lshl_u32 v{52+q}, v{48+q}, {st}, 2" if st<=64 else f"v_add_u32 v{52+q}, {st}, v{48+q}")
            if st>64: e(f"v_lshlrev_b32 v{52+q}, 2, v{52+q}")
            e(f"ds_read_b32 v{56+q}, v{52+q} offset:{LB_RO}")
        e("s_waitcnt lgkmcnt(0)")
        for q in range(4):
            e(f"v_lshrrev_b32 v{52+q}, 2, v{52+q}"); e(f"v_cmp_le_u32 vcc, v{56+q}, v{44+q}"); e("s_nop 1"); e(f"v_cndmask_b32 v{48+q}, v{48+q}, v{52+q}, vcc")
    for q in range(4):
        e(f"v_lshlrev_b32 v{48+q}, 2, v{48+q}"); e(f"ds_read_b32 v{48+q}, v{48+q} offset:{LB_TAB}")
    e("s_waitcnt lgkmcnt(0)")
    for q in range(4): e(f"v_add_u32 v{48+q}, v{48+q}, v{44+q}")
def clamp4():
    for q in range(4):
        e(f"v_add_u32 v{60+q}, {1024*q}, v4"); e(f"v_min_u32 v{44+q}, s24, v{60+q}")
kstart("k3b_kernel")
e(f"s_cmp_ge_u32 s2, {B}"); e("s_cbranch_scc1 kb_end")
e("s_load_dwordx2 s[4:5], s[0:1], 80"); e("s_waitcnt lgkmcnt(0)")
srd(8,4,WS_SIZE)
e("v_lshlrev_b32 v1, 2, v0"); e("v_mov_b32 v2, 0"); e("ds_write_b32 v1, v2")
e("v_mov_b32 v3, 1"); e("v_mov_b32 v10, 0"); e("v_mov_b32 v11, 0")
e("s_mul_i32 s20, s2, 1600"); e(f"s_add_u32 s20, s20, {WS_H}"); e("s_add_u32 s21, s20, 1600")
e("v_cmp_gt_u32 vcc, 400, v0"); e("s_and_saveexec_b64 s[18:19], vcc"); e("s_cbranch_execz kb_nh")
e("buffer_load_dword v10, v1, s[8:11], s20 offen"); e("buffer_load_dword v11, v1, s[8:11], s21 offen"); e("s_waitcnt vmcnt(0)")
lab("kb_nh"); e("s_mov_b64 exec, s[18:19]")
e("v_sub_u32 v11, v11, v10")
NW=16
e("v_mov_b32 v12, v10"); bscan16(12,20,LB_WS,13)
bscan16(11,20,LB_WS,14)
e("v_mul_u32_u24 v15, 2000, v0"); e("v_add_u32 v15, v15, v10"); e("v_sub_u32 v15, v15, v11")
e("v_cmp_gt_u32 vcc, 400, v0"); e("s_nop 1"); e("v_cndmask_b32 v11, -1, v11, vcc")
e("v_cmp_gt_u32 vcc, 512, v0"); e("s_and_saveexec_b64 s[18:19], vcc")
e(f"ds_write_b32 v1, v11 offset:{LB_RO}"); e(f"ds_write_b32 v1, v15 offset:{LB_TAB}")
e("s_mov_b64 exec, s[18:19]")
e("v_readfirstlane_b32 s12, v13"); e("v_readfirstlane_b32 s13, v14")
e(f"s_mov_b32 s20, {WS_BSRC}"); e("s_waitcnt lgkmcnt(0)"); e("s_barrier")
e("v_mov_b32 v4, v0")
e("s_sub_u32 s24, s13, 1")
lab("kb_l1")
e("v_cmp_gt_u32 vcc, s13, v4"); e("s_and_saveexec_b64 s[16:17], vcc"); e("s_cbranch_execz kb_l1e")
clamp4(); search4()
for q in range(4):
    e(f"v_lshlrev_b32 v{52+q}, 2, v{48+q}"); e(f"buffer_load_dword v{56+q}, v{52+q}, s[8:11], s20 offen")
e("s_waitcnt vmcnt(0)")
for q in range(4):
    e(f"v_bfe_u32 v{56+q}, v{56+q}, 16, 8"); e(f"v_lshlrev_b32 v{56+q}, 2, v{56+q}")
    e(f"v_cmp_gt_u32 vcc, s13, v{60+q}"); e("s_and_saveexec_b64 s[14:15], vcc"); e(f"ds_add_u32 v{56+q}, v3"); e("s_mov_b64 exec, s[14:15]")
e("v_add_u32 v4, 4096, v4"); e("s_branch kb_l1")
lab("kb_l1e"); e("s_mov_b64 exec, -1"); e("s_waitcnt lgkmcnt(0)"); e("s_barrier")
e("ds_read_b32 v8, v1"); e("s_waitcnt lgkmcnt(0)"); bscan16(8,20,LB_WS)
e("v_add_u32 v8, s12, v8"); e("v_cmp_gt_u32 vcc, 256, v0"); e("s_and_saveexec_b64 s[16:17], vcc"); e("s_cbranch_execz kb_sk"); e(f"ds_write_b32 v1, v8 offset:{LB_CUR}")
e("s_lshl_b32 s21, s2, 8"); e("v_add_u32 v9, s21, v0"); e(f"v_cmp_ge_u32 vcc, {N}, v9"); e("s_and_b64 exec, exec, vcc")
e("s_cbranch_execz kb_sk")
e("v_lshlrev_b32 v9, 2, v9"); e(f"s_mov_b32 s20, {WS_NOFF}"); e("buffer_store_dword v8, v9, s[8:11], s20 offen")
lab("kb_sk"); e("s_mov_b64 exec, -1"); e("s_waitcnt lgkmcnt(0)"); e("s_barrier")
e("v_mov_b32 v4, v0")
e(f"s_mov_b32 s20, {WS_BSRC}"); e(f"s_mov_b32 s21, {WS_BF}"); e(f"s_mov_b32 s22, {WS_SSRC}"); e(f"s_mov_b32 s23, {WS_SF}")
lab("kb_l2")
e("v_cmp_gt_u32 vcc, s13, v4"); e("s_and_saveexec_b64 s[16:17], vcc"); e("s_cbranch_execz kb_end")
clamp4(); search4()
for q in range(4):
    e(f"v_lshlrev_b32 v{52+q}, 2, v{48+q}"); e(f"v_lshlrev_b32 v{48+q}, 4, v{48+q}")
    e(f"buffer_load_dword v{56+q}, v{52+q}, s[8:11], s20 offen"); e(f"buffer_load_dwordx4 v[{64+4*q}:{67+4*q}], v{48+q}, s[8:11], s21 offen")
e("s_waitcnt vmcnt(0)")
for q in range(4):
    e(f"v_bfe_u32 v{52+q}, v{56+q}, 16, 8"); e(f"v_lshlrev_b32 v{52+q}, 2, v{52+q}"); e(f"v_and_b32 v{56+q}, 0xffff, v{56+q}")
    e(f"v_cmp_gt_u32 vcc, s13, v{60+q}"); e("s_and_saveexec_b64 s[14:15], vcc"); e(f"s_cbranch_execz kb_s{q}")
    e(f"ds_add_rtn_u32 v{52+q}, v{52+q}, v3 offset:{LB_CUR}"); e("s_waitcnt lgkmcnt(0)")
    e(f"v_lshlrev_b32 v{48+q}, 4, v{52+q}"); e(f"v_lshlrev_b32 v{52+q}, 2, v{52+q}")
    e(f"buffer_store_dword v{56+q}, v{52+q}, s[8:11], s22 offen"); e(f"buffer_store_dwordx4 v[{64+4*q}:{67+4*q}], v{48+q}, s[8:11], s23 offen")
    lab(f"kb_s{q}"); e("s_mov_b64 exec, s[14:15]")
e("v_add_u32 v4, 4096, v4"); e("s_branch kb_l2")
lab("kb_end"); e("s_endpgm"); kd("k3b_kernel",80)

D=8
def pk(op,d,s0,s1,s2=None,sel0=None):
    ops=f"v[{d}:{d+1}], {s0}, v[{s1}:{s1+1}]"+(f", v[{s2}:{s2+1}]" if s2 is not None else "")
    n=3 if s2 is not None else 2
    if sel0 is None: e(f"{op} {ops}")
    else:
        lo=[sel0]+[0]*(n-1); hi=[sel0]+[1]*(n-1)
        e(f"{op} {ops} op_sel:[{','.join(map(str,lo))}] op_sel_hi:[{','.join(map(str,hi))}]")
kstart("k4m_kernel")
e("v_lshrrev_b32 v1, 6, v0"); e("s_nop 0"); e("v_readfirstlane_b32 s3, v1")
e("s_lshl_b32 s2, s2, 2"); e("s_mov_b32 s65, s2"); e("s_mov_b32 s64, s3"); e("s_add_u32 s2, s2, s3")
e(f"s_cmp_ge_u32 s2, {N}"); e("s_cbranch_scc1 km_end")
e("s_load_dwordx2 s[66:67], s[0:1], 64"); e("s_load_dwordx2 s[4:5], s[0:1], 0"); e("s_load_dwordx4 s[20:23], s[0:1], 40"); e("s_load_dwordx2 s[6:7], s[0:1], 80"); e("s_waitcnt lgkmcnt(0)")
srd(8,4,N*512); srd(12,6,WS_SIZE); srd(24,20,128); srd(28,22,512); srd(68,66,N*512)
e("s_lshl_b32 s3, s2, 2"); e(f"s_add_u32 s3, s3, {WS_NOFF}"); e("s_add_u32 s16, s6, s3"); e("s_addc_u32 s17, s7, 0")
e("s_load_dwordx2 s[18:19], s[16:17], 0")
e("v_and_b32 v0, 63, v0")
e("v_lshlrev_b32 v1, 2, v0")
e("v_and_b32 v2, 31, v0"); e("v_lshlrev_b32 v2, 2, v2")
for d in range(4): e(f"buffer_load_dword v{32+d}, v2, s[28:31], 0 offen offset:{128*d}")
e("v_lshrrev_b32 v3, 5, v0"); e("v_lshlrev_b32 v3, 5, v3")
for q in range(4): e(f"buffer_load_dwordx4 v[{64+4*q}:{67+4*q}], v3, s[24:27], 0 offen offset:{(q&1)*16+(q>>1)*64}")
e("s_waitcnt vmcnt(4)")
for d in range(4):
    e(f"v_lshlrev_b32 v{16+2*d}, 16, v{32+d}"); e(f"v_and_b32 v{17+2*d}, 0xffff0000, v{32+d}")
for i in range(16): e(f"v_mov_b32 v{32+i}, 0")
e("s_waitcnt lgkmcnt(0)")
e(f"s_mov_b32 s32, {WS_SSRC}"); e(f"s_mov_b32 s33, {WS_SF}")
e("s_mov_b32 s34, s18")
lab("km_batch")
e("s_sub_u32 s35, s19, s34"); e("s_cmp_eq_u32 s35, 0"); e("s_cbranch_scc1 km_done")
e("s_lshl_b32 s39, s34, 4"); e(f"s_add_u32 s39, s39, {WS_SF}"); e("s_add_u32 s16, s12, s39"); e("s_addc_u32 s17, s13, 0")
e("s_lshl_b32 s39, s34, 2"); e(f"s_add_u32 s39, s39, {WS_SSRC}"); e("s_add_u32 s96, s12, s39"); e("s_addc_u32 s97, s13, 0")
e("s_load_dwordx8 s[24:31], s[96:97], 0"); e("s_load_dwordx16 s[72:87], s[16:17], 0")
e("s_waitcnt lgkmcnt(0)")
for i in range(D):
    e(f"s_lshl_b32 s{40+i}, s{24+i}, 9"); e(f"s_cmp_le_u32 s35, {i}"); e(f"s_cselect_b32 s{40+i}, 0x7f000000, s{40+i}")
e("s_load_dwordx8 s[24:31], s[96:97], 32")
for i in range(D):
    e(f"buffer_load_dword v{48+2*i}, v1, s[8:11], s{40+i} offen"); e(f"buffer_load_dword v{49+2*i}, v1, s[8:11], s{40+i} offen offset:256")
e("s_mov_b32 s38, 0")
lab("km_loop")
for i in range(D):
    if i==0:
        e("s_waitcnt lgkmcnt(0)")
        for j in range(D):
            e(f"s_lshl_b32 s{88+j}, s{24+j}, 9"); e(f"s_add_u32 s39, s38, {j+D}"); e("s_cmp_ge_u32 s39, s35"); e(f"s_cselect_b32 s{88+j}, 0x7f000000, s{88+j}")
        e("s_load_dwordx8 s[24:31], s[96:97], 64"); e("s_load_dwordx16 s[48:63], s[16:17], 64")
    if i==4: e("s_waitcnt lgkmcnt(0)"); e("s_load_dwordx16 s[72:87], s[16:17], 128")
    fb=(72 if i<4 else 48)+4*(i&3)
    for q in range(4):
        dd=(20,22,4,6)[q]
        e(f"s_lshl_b32 s{dd}, s{fb+q}, 16"); e(f"s_and_b32 s{dd+1}, s{fb+q}, 0xffff0000")
    e(f"s_waitcnt vmcnt({2*(D-1)})")
    b=48+2*i
    e(f"v_lshlrev_b32 v24, 16, v{b}"); e(f"v_and_b32 v25, 0xffff0000, v{b}"); e(f"v_lshlrev_b32 v26, 16, v{b+1}"); e(f"v_and_b32 v27, 0xffff0000, v{b+1}")
    e(f"buffer_load_dword v{b}, v1, s[8:11], s{88+i} offen"); e(f"buffer_load_dword v{b+1}, v1, s[8:11], s{88+i} offen offset:256")
    pk("v_pk_mul_f32",28,"s[4:5]",16,None,0)
    pk("v_pk_fma_f32",28,"s[4:5]",18,28,1)
    pk("v_pk_fma_f32",28,"s[6:7]",20,28,0)
    pk("v_pk_fma_f32",28,"s[6:7]",22,28,1)
    pk("v_pk_mul_f32",24,"v[28:29]",24)
    pk("v_pk_mul_f32",26,"v[28:29]",26)
    for v in range(4):
        for ui in range(2):
            pk("v_pk_fma_f32",32+8*ui+2*v,f"s[{20+(v&2)}:{21+(v&2)}]",24+2*ui,32+8*ui+2*v,v&1)
    if i<D-1:
        e(f"s_add_u32 s39, s38, {i+1}"); e("s_cmp_ge_u32 s39, s35"); e("s_cbranch_scc1 km_bend")
e("s_add_u32 s16, s16, 128"); e("s_addc_u32 s17, s17, 0"); e("s_add_u32 s96, s96, 32"); e("s_addc_u32 s97, s97, 0")
e(f"s_add_u32 s38, s38, {D}"); e("s_cmp_lt_u32 s38, s35"); e("s_cbranch_scc1 km_loop")
lab("km_bend")
e("s_waitcnt vmcnt(0) lgkmcnt(0)")
lab("km_done")
e("s_waitcnt vmcnt(0)")
first=True
for ui in range(2):
    for v in range(4):
        for wp in range(2):
            src=64+8*ui+2*v+wp
            e(f"v_lshlrev_b32 v{48+2*wp}, 16, v{src}"); e(f"v_and_b32 v{49+2*wp}, 0xffff0000, v{src}")
        for w in range(4):
            t=32+8*ui+2*v
            if first: pk("v_pk_mul_f32",16+2*w,f"v[{48+(w&2)}:{49+(w&2)}]",t,None,w&1)
            else: pk("v_pk_fma_f32",16+2*w,f"v[{48+(w&2)}:{49+(w&2)}]",t,16+2*w,w&1)
        first=False
for r in range(8): e(f"v_mov_b32 v{24+r}, v{16+r}")
e("s_nop 1")
for r in range(8): e(f"v_permlane32_swap_b32 v{16+r}, v{24+r}")
for r in range(8): e(f"v_add_f32 v{16+r}, v{16+r}, v{24+r}")
e("v_cmp_le_u32 vcc, 32, v0"); e("s_nop 1")
for r in range(4): e(f"v_cndmask_b32 v{16+r}, v{16+r}, v{20+r}, vcc")
e("v_cvt_pk_bf16_f32 v20, v16, v17"); e("v_cvt_pk_bf16_f32 v21, v18, v19")
e("v_and_b32 v4, 15, v0"); e("v_lshrrev_b32 v5, 4, v0")
e("v_lshlrev_b32 v6, 7, v4"); e("v_lshl_add_u32 v6, v5, 4, v6")
e("s_lshl_b32 s39, s64, 11"); e(f"s_add_u32 s39, s39, {WS_WT}")
e("buffer_load_dwordx4 v[32:35], v6, s[12:15], s39 offen"); e("buffer_load_dwordx4 v[36:39], v6, s[12:15], s39 offen offset:64")
e("v_lshrrev_b32 v3, 5, v0"); e("v_mul_u32_u24 v3, 288, v3"); e("v_add_u32 v3, v3, v2")
e("s_mul_i32 s39, s64, 576"); e("v_add_u32 v3, s39, v3")
e("ds_write_b32 v3, v20"); e("ds_write_b32 v3, v21 offset:144")
e("s_waitcnt lgkmcnt(0)"); e("s_barrier")
e("v_mul_u32_u24 v7, 144, v4"); e("v_lshl_add_u32 v7, v5, 4, v7")
e("ds_read_b128 v[40:43], v7"); e("ds_read_b128 v[44:47], v7 offset:64")
e("s_waitcnt vmcnt(0) lgkmcnt(0)")
e("v_mfma_f32_16x16x32_bf16 v[48:51], v[32:35], v[40:43], 0")
e("v_mfma_f32_16x16x32_bf16 v[48:51], v[36:39], v[44:47], v[48:51]")
e("v_lshlrev_b32 v6, 7, v4"); e("v_lshl_add_u32 v6, v5, 3, v6")
e("s_lshl_b32 s39, s65, 9"); e("s_lshl_b32 s38, s64, 5"); e("s_add_u32 s39, s39, s38")
e("s_nop 7"); e("s_nop 3")
e("v_cvt_pk_bf16_f32 v52, v48, v49"); e("v_cvt_pk_bf16_f32 v53, v50, v51")
e("buffer_store_dwordx2 v[52:53], v6, s[68:71], s39 offen")
lab("km_end"); e("s_endpgm"); kd("k4m_kernel",80,100)

hdr=open('gather_scatter__tensor_product_equiv_mace__graph.s.ref').read().split('\n')
hdr=[l for l in hdr if l.startswith(';') and '@launch' not in l]
L=["; @launch kernel=k2s_kernel grid=(400,1,1) block=(256,1,1) lds=44288",
f"; @launch kernel=k3b_kernel grid=({B},1,1) block=(1024,1,1) lds=10240",
"; @launch kernel=k4m_kernel grid=(12500,1,1) block=(256,1,1) lds=2304"]
txt="\n".join(hdr+L)+'\n.amdgcn_target "amdgcn-amd-amdhsa--gfx950"\n.text\n'+"\n".join(out)+'\n.section .rodata,"a"\n'+"\n".join(".p2align 6\n"+k for k in kds)+"\n"
open('gather_scatter__tensor_product_equiv_mace__graph.s','w').write(txt)
```

```python
N=50000; E=800000; B=782
WS_CNT=0x0; WS_CUR=0x1000; WS_BASE=0x2000; WS_NOFF=0x4000
WS_BSRC=0x100000; WS_BF=0x500000; WS_SSRC=0x1200000; WS_SF=0x1600000; WS_AGG=0x2400000
WS_SIZE=268435456; WS_WT=0xF0000; WS_H=0x2400000
out=[]
def e(s): out.append("    "+s)
def lab(s): out.append(s+":")
def srd(d, lo, size):
    e(f"s_mov_b32 s{d}, s{lo}"); e(f"s_and_b32 s{d+1}, s{lo+1}, 0xffff"); e(f"s_mov_b32 s{d+2}, {size:#x}"); e(f"s_mov_b32 s{d+3}, 0x00020000")
def kstart(name):
    out.append(f".globl {name}\n.p2align 8\n.type {name},@function\n{name}:")
def scan64(v):
    for sh in (1,2,4,8):
        e("s_nop 1"); e(f"v_add_u32_dpp v{v}, v{v}, v{v} row_shr:{sh} row_mask:0xf bank_mask:0xf bound_ctrl:0")
    e("s_nop 1"); e(f"v_add_u32_dpp v{v}, v{v}, v{v} row_bcast:15 row_mask:0xa bank_mask:0xf")
    e("s_nop 1"); e(f"v_add_u32_dpp v{v}, v{v}, v{v} row_bcast:31 row_mask:0xc bank_mask:0xf")
    e("s_nop 1")
kds=[]
def kd(name, vgpr, sgpr=96):
    kds.append(f""".amdhsa_kernel {name}
  .amdhsa_next_free_vgpr {vgpr}
  .amdhsa_next_free_sgpr {sgpr}
  .amdhsa_accum_offset {(vgpr+3)//4*4}
  .amdhsa_group_segment_fixed_size 0
  .amdhsa_kernarg_size 88
  .amdhsa_user_sgpr_count 2
  .amdhsa_user_sgpr_kernarg_segment_ptr 1
  .amdhsa_system_sgpr_workgroup_id_x 1
.end_amdhsa_kernel""")

B=391
def bscan16(v, t, wsumoff, tot=None):
    e(f"v_mov_b32 v{t}, v{v}"); scan64(t)
    e(f"v_lshrrev_b32 v{t+1}, 6, v0"); e(f"v_lshlrev_b32 v{t+2}, 2, v{t+1}")
    e(f"v_and_b32 v{t+3}, 63, v0"); e(f"v_cmp_eq_u32 vcc, 63, v{t+3}"); e("s_and_saveexec_b64 s[16:17], vcc")
    e(f"ds_write_b32 v{t+2}, v{t} offset:{wsumoff}"); e("s_mov_b64 exec, s[16:17]")
    e("s_waitcnt lgkmcnt(0)"); e("s_barrier")
    e(f"v_mov_b32 v{t+2}, 0")
    for k in range(4): e(f"ds_read_b128 v[{t+4+4*k}:{t+7+4*k}], v{t+2} offset:{wsumoff+16*k}")
    e("s_waitcnt lgkmcnt(0)")
    e(f"v_sub_u32 v{v}, v{t}, v{v}")
    if tot is not None: e(f"v_mov_b32 v{tot}, 0")
    for k in range(NW):
        if tot is not None: e(f"v_add_u32 v{tot}, v{tot}, v{t+4+k}")
        e(f"v_cmp_lt_u32 vcc, {k}, v{t+1}"); e("s_nop 1"); e(f"v_cndmask_b32 v{t+4+k}, 0, v{t+4+k}, vcc"); e(f"v_add_u32 v{v}, v{v}, v{t+4+k}")
    e("s_barrier")

L_H=0; L_CUR=2048; L_WS=4096; L_IDX=5120; L_F=13312
kstart("k2s_kernel")
e("s_cmp_ge_u32 s2, 400"); e("s_cbranch_scc1 k2_end")
e("s_load_dwordx4 s[4:7], s[0:1], 8"); e("s_load_dwordx4 s[20:23], s[0:1], 24"); e("s_load_dwordx2 s[24:25], s[0:1], 80"); e("s_load_dwordx2 s[26:27], s[0:1], 56"); e("s_waitcnt lgkmcnt(0)")
srd(8,4,E*4); srd(12,6,E*4); srd(28,20,E*8); srd(32,22,E*8); srd(36,24,WS_SIZE); srd(44,26,8192)
e("s_cmp_lg_u32 s2, 0"); e("s_cbranch_scc1 k2_notr")
e("v_and_b32 v2, 63, v0"); e("v_lshrrev_b32 v3, 6, v0"); e("v_lshlrev_b32 v8, 11, v3"); e("v_lshl_add_u32 v8, v2, 1, v8")
for i in range(16): e(f"buffer_load_ushort v{16+i}, v8, s[44:47], 0 offen offset:{128*i}")
e("v_lshlrev_b32 v9, 7, v2"); e("v_lshl_add_u32 v9, v3, 5, v9"); e("s_waitcnt vmcnt(0)")
for i in range(8): e(f"v_lshl_or_b32 v{32+i}, v{17+2*i}, 16, v{16+2*i}")
e(f"s_mov_b32 s42, {WS_WT}"); e("buffer_store_dwordx4 v[32:35], v9, s[36:39], s42 offen"); e("buffer_store_dwordx4 v[36:39], v9, s[36:39], s42 offen offset:16")
e("s_waitcnt vmcnt(0)")
lab("k2_notr")
e("v_lshlrev_b32 v1, 2, v0"); e("v_lshlrev_b32 v78, 3, v0"); e("v_mov_b32 v2, 0"); e("v_mov_b32 v3, 0"); e(f"ds_write_b64 v78, v[2:3] offset:{L_H}")
e("s_mul_i32 s3, s2, 8000")
e("v_lshlrev_b32 v6, 5, v0"); e("v_add_u32 v6, s3, v6"); e("v_lshlrev_b32 v7, 1, v6")
e("v_cmp_gt_u32 vcc, 250, v0"); e("s_and_saveexec_b64 s[18:19], vcc")
e("buffer_load_dwordx4 v[8:11], v6, s[12:15], 0 offen"); e("buffer_load_dwordx4 v[12:15], v6, s[12:15], 0 offen offset:16")
e("buffer_load_dwordx4 v[16:19], v6, s[8:11], 0 offen"); e("buffer_load_dwordx4 v[20:23], v6, s[8:11], 0 offen offset:16")
for i in range(4): e(f"buffer_load_dwordx4 v[{24+4*i}:{27+4*i}], v7, s[28:31], 0 offen offset:{16*i}")
for i in range(4): e(f"buffer_load_dwordx4 v[{40+4*i}:{43+4*i}], v7, s[32:35], 0 offen offset:{16*i}")
e("s_mov_b64 exec, s[18:19]"); e("s_waitcnt vmcnt(0) lgkmcnt(0)"); e("s_barrier")
e("v_mov_b32 v79, 1")
e("v_cmp_gt_u32 vcc, 250, v0"); e("s_and_saveexec_b64 s[16:17], vcc")
for i in range(8):
    e(f"v_lshrrev_b32 v{68+i}, 7, v{8+i}"); e(f"v_lshlrev_b32 v{68+i}, 2, v{68+i}")
for i in range(8): e(f"ds_add_u32 v{68+i}, v79 offset:{L_H}")
e("s_mov_b64 exec, s[16:17]"); e("s_waitcnt lgkmcnt(0)"); e("s_barrier")
e(f"ds_read_b64 v[56:57], v78 offset:{L_H}"); e("s_waitcnt lgkmcnt(0)")
e("v_add_u32 v58, v56, v57")
NW=4
bscan16(58,80,L_WS)
e("v_add_u32 v59, v58, v56")
e(f"ds_write_b64 v78, v[58:59] offset:{L_CUR}")
e("s_movk_i32 s42, 3200"); e("v_mul_lo_u32 v60, s42, v0"); e("s_lshl_b32 s42, s2, 2"); e(f"s_add_u32 s42, s42, {WS_H}")
e("buffer_store_dword v58, v60, s[36:39], s42 offen"); e("buffer_store_dword v59, v60, s[36:39], s42 offen offset:1600")
e("s_waitcnt lgkmcnt(0)"); e("s_barrier")
e("v_cmp_gt_u32 vcc, 250, v0"); e("s_and_saveexec_b64 s[16:17], vcc")
for i in range(8): e(f"ds_add_rtn_u32 v{68+i}, v{68+i}, v79 offset:{L_CUR}")
e("s_waitcnt lgkmcnt(0)")
for i in range(8):
    e(f"v_lshlrev_b32 v{8+i}, 16, v{8+i}"); e(f"v_or_b32 v{8+i}, v{8+i}, v{16+i}")
    e(f"v_lshlrev_b32 v76, 2, v{68+i}"); e(f"ds_write_b32 v76, v{8+i} offset:{L_IDX}")
    e(f"v_lshlrev_b32 v77, 4, v{68+i}")
    e(f"ds_write_b64 v77, v[{24+2*i}:{25+2*i}] offset:{L_F}"); e(f"ds_write_b64 v77, v[{40+2*i}:{41+2*i}] offset:{L_F+8}")
e("s_mov_b64 exec, s[16:17]"); e("s_waitcnt lgkmcnt(0)"); e("s_barrier")
e(f"s_add_u32 s40, s3, {WS_BSRC}"); e("s_lshl_b32 s41, s3, 2"); e(f"s_add_u32 s41, s41, {WS_BF}")
e("v_lshlrev_b32 v2, 4, v0")
for it in range(8):
    if it==7:
        e("v_cmp_gt_u32 vcc, 208, v0"); e("s_and_saveexec_b64 s[16:17], vcc"); e("s_cbranch_execz k2_end")
    e(f"ds_read_b32 v{8+it}, v1 offset:{L_IDX+1024*it}"); e(f"ds_read_b128 v[{24+4*it}:{27+4*it}], v2 offset:{L_F+4096*it}")
    e("s_waitcnt lgkmcnt(0)")
    e(f"buffer_store_dword v{8+it}, v1, s[36:39], s40 offen offset:{1024*it if it<4 else 0}" if it<4 else f"s_nop 0")
    if it>=4:
        e(f"v_add_u32 v60, {1024*it}, v1"); e(f"buffer_store_dword v{8+it}, v60, s[36:39], s40 offen")
    e(f"v_add_u32 v61, {4096*it}, v2"); e(f"buffer_store_dwordx4 v[{24+4*it}:{27+4*it}], v61, s[36:39], s41 offen")
lab("k2_end"); e("s_endpgm"); kd("k2s_kernel",104)

LB_CUR=4096; LB_WS=5120; LB_RO=6144; LB_TAB=8192
def search4():
    for q in range(4): e(f"v_mov_b32 v{48+q}, 0")
    for st in (256,128,64,32,16,8,4,2,1):
        for q in range(4):
            e(f"v_add_lshl_u32 v{52+q}, v{48+q}, {st}, 2" if st<=64 else f"v_add_u32 v{52+q}, {st}, v{48+q}")
            if st>64: e(f"v_lshlrev_b32 v{52+q}, 2, v{52+q}")
            e(f"ds_read_b32 v{56+q}, v{52+q} offset:{LB_RO}")
        e("s_waitcnt lgkmcnt(0)")
        for q in range(4):
            e(f"v_lshrrev_b32 v{52+q}, 2, v{52+q}"); e(f"v_cmp_le_u32 vcc, v{56+q}, v{44+q}"); e("s_nop 1"); e(f"v_cndmask_b32 v{48+q}, v{48+q}, v{52+q}, vcc")
    for q in range(4):
        e(f"v_lshlrev_b32 v{48+q}, 2, v{48+q}"); e(f"ds_read_b32 v{48+q}, v{48+q} offset:{LB_TAB}")
    e("s_waitcnt lgkmcnt(0)")
    for q in range(4): e(f"v_add_u32 v{48+q}, v{48+q}, v{44+q}")
def clamp4():
    for q in range(4):
        e(f"v_add_u32 v{60+q}, {512*q}, v4"); e(f"v_min_u32 v{44+q}, s24, v{60+q}")
kstart("k3b_kernel")
e(f"s_cmp_ge_u32 s2, {B}"); e("s_cbranch_scc1 kb_end")
e("s_load_dwordx2 s[4:5], s[0:1], 80"); e("s_waitcnt lgkmcnt(0)")
srd(8,4,WS_SIZE)
e("v_lshlrev_b32 v1, 2, v0"); e("v_mov_b32 v2, 0"); e("ds_write_b32 v1, v2")
e("v_mov_b32 v3, 1"); e("v_mov_b32 v10, 0"); e("v_mov_b32 v11, 0")
e("s_mul_i32 s20, s2, 1600"); e(f"s_add_u32 s20, s20, {WS_H}"); e("s_add_u32 s21, s20, 1600")
e("v_cmp_gt_u32 vcc, 400, v0"); e("s_and_saveexec_b64 s[18:19], vcc"); e("s_cbranch_execz kb_nh")
e("buffer_load_dword v10, v1, s[8:11], s20 offen"); e("buffer_load_dword v11, v1, s[8:11], s21 offen"); e("s_waitcnt vmcnt(0)")
lab("kb_nh"); e("s_mov_b64 exec, s[18:19]")
e("v_sub_u32 v11, v11, v10")
NW=8
e("v_mov_b32 v12, v10"); bscan16(12,20,LB_WS,13)
bscan16(11,20,LB_WS,14)
e("v_mul_u32_u24 v15, 2000, v0"); e("v_add_u32 v15, v15, v10"); e("v_sub_u32 v15, v15, v11")
e("v_cmp_gt_u32 vcc, 400, v0"); e("s_nop 1"); e("v_cndmask_b32 v11, -1, v11, vcc")
e("v_cmp_gt_u32 vcc, 512, v0"); e("s_and_saveexec_b64 s[18:19], vcc")
e(f"ds_write_b32 v1, v11 offset:{LB_RO}"); e(f"ds_write_b32 v1, v15 offset:{LB_TAB}")
e("s_mov_b64 exec, s[18:19]")
e("v_readfirstlane_b32 s12, v13"); e("v_readfirstlane_b32 s13, v14")
e(f"s_mov_b32 s20, {WS_BSRC}"); e("s_waitcnt lgkmcnt(0)"); e("s_barrier")
e("v_mov_b32 v4, v0")
e("s_sub_u32 s24, s13, 1")
lab("kb_l1")
e("v_cmp_gt_u32 vcc, s13, v4"); e("s_and_saveexec_b64 s[16:17], vcc"); e("s_cbranch_execz kb_l1e")
clamp4(); search4()
for q in range(4):
    e(f"v_lshlrev_b32 v{52+q}, 2, v{48+q}"); e(f"buffer_load_dword v{56+q}, v{52+q}, s[8:11], s20 offen")
e("s_waitcnt vmcnt(0)")
for q in range(4):
    e(f"v_bfe_u32 v{56+q}, v{56+q}, 16, 7"); e(f"v_lshlrev_b32 v{56+q}, 2, v{56+q}")
    e(f"v_cmp_gt_u32 vcc, s13, v{60+q}"); e("s_and_saveexec_b64 s[14:15], vcc"); e(f"ds_add_u32 v{56+q}, v3"); e("s_mov_b64 exec, s[14:15]")
e("v_add_u32 v4, 2048, v4"); e("s_branch kb_l1")
lab("kb_l1e"); e("s_mov_b64 exec, -1"); e("s_waitcnt lgkmcnt(0)"); e("s_barrier")
e("ds_read_b32 v8, v1"); e("s_waitcnt lgkmcnt(0)"); bscan16(8,20,LB_WS)
e("v_add_u32 v8, s12, v8"); e("v_cmp_gt_u32 vcc, 128, v0"); e("s_and_saveexec_b64 s[16:17], vcc"); e("s_cbranch_execz kb_sk"); e(f"ds_write_b32 v1, v8 offset:{LB_CUR}")
e("s_lshl_b32 s21, s2, 7"); e("v_add_u32 v9, s21, v0"); e(f"v_cmp_ge_u32 vcc, {N}, v9"); e("s_and_b64 exec, exec, vcc")
e("s_cbranch_execz kb_sk")
e("v_lshlrev_b32 v9, 2, v9"); e(f"s_mov_b32 s20, {WS_NOFF}"); e("buffer_store_dword v8, v9, s[8:11], s20 offen")
lab("kb_sk"); e("s_mov_b64 exec, -1"); e("s_waitcnt lgkmcnt(0)"); e("s_barrier")
e("v_mov_b32 v4, v0")
e(f"s_mov_b32 s20, {WS_BSRC}"); e(f"s_mov_b32 s21, {WS_BF}"); e(f"s_mov_b32 s22, {WS_SSRC}"); e(f"s_mov_b32 s23, {WS_SF}")
lab("kb_l2")
e("v_cmp_gt_u32 vcc, s13, v4"); e("s_and_saveexec_b64 s[16:17], vcc"); e("s_cbranch_execz kb_end")
clamp4(); search4()
for q in range(4):
    e(f"v_lshlrev_b32 v{52+q}, 2, v{48+q}"); e(f"v_lshlrev_b32 v{48+q}, 4, v{48+q}")
    e(f"buffer_load_dword v{56+q}, v{52+q}, s[8:11], s20 offen"); e(f"buffer_load_dwordx4 v[{64+4*q}:{67+4*q}], v{48+q}, s[8:11], s21 offen")
e("s_waitcnt vmcnt(0)")
for q in range(4):
    e(f"v_bfe_u32 v{52+q}, v{56+q}, 16, 7"); e(f"v_lshlrev_b32 v{52+q}, 2, v{52+q}"); e(f"v_and_b32 v{56+q}, 0xffff, v{56+q}")
    e(f"v_cmp_gt_u32 vcc, s13, v{60+q}"); e("s_and_saveexec_b64 s[14:15], vcc"); e(f"s_cbranch_execz kb_s{q}")
    e(f"ds_add_rtn_u32 v{52+q}, v{52+q}, v3 offset:{LB_CUR}"); e("s_waitcnt lgkmcnt(0)")
    e(f"v_lshlrev_b32 v{48+q}, 4, v{52+q}"); e(f"v_lshlrev_b32 v{52+q}, 2, v{52+q}")
    e(f"buffer_store_dword v{56+q}, v{52+q}, s[8:11], s22 offen"); e(f"buffer_store_dwordx4 v[{64+4*q}:{67+4*q}], v{48+q}, s[8:11], s23 offen")
    lab(f"kb_s{q}"); e("s_mov_b64 exec, s[14:15]")
e("v_add_u32 v4, 2048, v4"); e("s_branch kb_l2")
lab("kb_end"); e("s_endpgm"); kd("k3b_kernel",80)

D=8
def pk(op,d,s0,s1,s2=None,sel0=None):
    ops=f"v[{d}:{d+1}], {s0}, v[{s1}:{s1+1}]"+(f", v[{s2}:{s2+1}]" if s2 is not None else "")
    n=3 if s2 is not None else 2
    if sel0 is None: e(f"{op} {ops}")
    else:
        lo=[sel0]+[0]*(n-1); hi=[sel0]+[1]*(n-1)
        e(f"{op} {ops} op_sel:[{','.join(map(str,lo))}] op_sel_hi:[{','.join(map(str,hi))}]")
kstart("k4m_kernel")
e("v_lshrrev_b32 v1, 6, v0"); e("s_nop 0"); e("v_readfirstlane_b32 s3, v1")
e("s_lshl_b32 s2, s2, 2"); e("s_mov_b32 s65, s2"); e("s_mov_b32 s64, s3"); e("s_add_u32 s2, s2, s3")
e(f"s_cmp_ge_u32 s2, {N}"); e("s_cbranch_scc1 km_end")
e("s_load_dwordx2 s[66:67], s[0:1], 64"); e("s_load_dwordx2 s[4:5], s[0:1], 0"); e("s_load_dwordx4 s[20:23], s[0:1], 40"); e("s_load_dwordx2 s[6:7], s[0:1], 80"); e("s_waitcnt lgkmcnt(0)")
srd(8,4,N*512); srd(12,6,WS_SIZE); srd(24,20,128); srd(28,22,512); srd(68,66,N*512)
e("s_lshl_b32 s3, s2, 2"); e(f"s_add_u32 s3, s3, {WS_NOFF}"); e("s_add_u32 s16, s6, s3"); e("s_addc_u32 s17, s7, 0")
e("s_load_dwordx2 s[18:19], s[16:17], 0")
e("v_and_b32 v0, 63, v0")
e("v_lshlrev_b32 v1, 2, v0")
e("v_and_b32 v2, 31, v0"); e("v_lshlrev_b32 v2, 2, v2")
for d in range(4): e(f"buffer_load_dword v{32+d}, v2, s[28:31], 0 offen offset:{128*d}")
e("v_lshrrev_b32 v3, 5, v0"); e("v_lshlrev_b32 v3, 5, v3")
for q in range(4): e(f"buffer_load_dwordx4 v[{64+4*q}:{67+4*q}], v3, s[24:27], 0 offen offset:{(q&1)*16+(q>>1)*64}")
e("s_waitcnt vmcnt(4)")
for d in range(4):
    e(f"v_lshlrev_b32 v{16+2*d}, 16, v{32+d}"); e(f"v_and_b32 v{17+2*d}, 0xffff0000, v{32+d}")
for i in range(16): e(f"v_mov_b32 v{32+i}, 0")
e("s_waitcnt lgkmcnt(0)")
e(f"s_mov_b32 s32, {WS_SSRC}"); e(f"s_mov_b32 s33, {WS_SF}")
e("s_mov_b32 s34, s18")
lab("km_batch")
e("s_sub_u32 s35, s19, s34"); e("s_cmp_eq_u32 s35, 0"); e("s_cbranch_scc1 km_done")
e("s_lshl_b32 s39, s34, 4"); e(f"s_add_u32 s39, s39, {WS_SF}"); e("s_add_u32 s16, s12, s39"); e("s_addc_u32 s17, s13, 0")
e("s_lshl_b32 s39, s34, 2"); e(f"s_add_u32 s39, s39, {WS_SSRC}"); e("s_add_u32 s96, s12, s39"); e("s_addc_u32 s97, s13, 0")
e("s_load_dwordx8 s[24:31], s[96:97], 0"); e("s_load_dwordx16 s[72:87], s[16:17], 0")
e("s_waitcnt lgkmcnt(0)")
for i in range(D):
    e(f"s_lshl_b32 s{40+i}, s{24+i}, 9"); e(f"s_cmp_le_u32 s35, {i}"); e(f"s_cselect_b32 s{40+i}, 0x7f000000, s{40+i}")
e("s_load_dwordx8 s[24:31], s[96:97], 32")
for i in range(D):
    e(f"buffer_load_dword v{48+2*i}, v1, s[8:11], s{40+i} offen"); e(f"buffer_load_dword v{49+2*i}, v1, s[8:11], s{40+i} offen offset:256")
e("s_mov_b32 s38, 0")
lab("km_loop")
for i in range(D):
    if i==0:
        e("s_waitcnt lgkmcnt(0)")
        for j in range(D):
            e(f"s_lshl_b32 s{88+j}, s{24+j}, 9"); e(f"s_add_u32 s39, s38, {j+D}"); e("s_cmp_ge_u32 s39, s35"); e(f"s_cselect_b32 s{88+j}, 0x7f000000, s{88+j}")
        e("s_load_dwordx8 s[24:31], s[96:97], 64"); e("s_load_dwordx16 s[48:63], s[16:17], 64")
    if i==4: e("s_waitcnt lgkmcnt(0)"); e("s_load_dwordx16 s[72:87], s[16:17], 128")
    fb=(72 if i<4 else 48)+4*(i&3)
    for q in range(4):
        dd=(20,22,4,6)[q]
        e(f"s_lshl_b32 s{dd}, s{fb+q}, 16"); e(f"s_and_b32 s{dd+1}, s{fb+q}, 0xffff0000")
    e(f"s_waitcnt vmcnt({2*(D-1)})")
    b=48+2*i
    e(f"v_lshlrev_b32 v24, 16, v{b}"); e(f"v_and_b32 v25, 0xffff0000, v{b}"); e(f"v_lshlrev_b32 v26, 16, v{b+1}"); e(f"v_and_b32 v27, 0xffff0000, v{b+1}")
    e(f"buffer_load_dword v{b}, v1, s[8:11], s{88+i} offen"); e(f"buffer_load_dword v{b+1}, v1, s[8:11], s{88+i} offen offset:256")
    pk("v_pk_mul_f32",28,"s[4:5]",16,None,0)
    pk("v_pk_fma_f32",28,"s[4:5]",18,28,1)
    pk("v_pk_fma_f32",28,"s[6:7]",20,28,0)
    pk("v_pk_fma_f32",28,"s[6:7]",22,28,1)
    pk("v_pk_mul_f32",24,"v[28:29]",24)
    pk("v_pk_mul_f32",26,"v[28:29]",26)
    for v in range(4):
        for ui in range(2):
            pk("v_pk_fma_f32",32+8*ui+2*v,f"s[{20+(v&2)}:{21+(v&2)}]",24+2*ui,32+8*ui+2*v,v&1)
    if i<D-1:
        e(f"s_add_u32 s39, s38, {i+1}"); e("s_cmp_ge_u32 s39, s35"); e("s_cbranch_scc1 km_bend")
e("s_add_u32 s16, s16, 128"); e("s_addc_u32 s17, s17, 0"); e("s_add_u32 s96, s96, 32"); e("s_addc_u32 s97, s97, 0")
e(f"s_add_u32 s38, s38, {D}"); e("s_cmp_lt_u32 s38, s35"); e("s_cbranch_scc1 km_loop")
lab("km_bend")
e("s_waitcnt vmcnt(0) lgkmcnt(0)")
lab("km_done")
e("s_waitcnt vmcnt(0)")
first=True
for ui in range(2):
    for v in range(4):
        for wp in range(2):
            src=64+8*ui+2*v+wp
            e(f"v_lshlrev_b32 v{48+2*wp}, 16, v{src}"); e(f"v_and_b32 v{49+2*wp}, 0xffff0000, v{src}")
        for w in range(4):
            t=32+8*ui+2*v
            if first: pk("v_pk_mul_f32",16+2*w,f"v[{48+(w&2)}:{49+(w&2)}]",t,None,w&1)
            else: pk("v_pk_fma_f32",16+2*w,f"v[{48+(w&2)}:{49+(w&2)}]",t,16+2*w,w&1)
        first=False
for r in range(8): e(f"v_mov_b32 v{24+r}, v{16+r}")
e("s_nop 1")
for r in range(8): e(f"v_permlane32_swap_b32 v{16+r}, v{24+r}")
for r in range(8): e(f"v_add_f32 v{16+r}, v{16+r}, v{24+r}")
e("v_cmp_le_u32 vcc, 32, v0"); e("s_nop 1")
for r in range(4): e(f"v_cndmask_b32 v{16+r}, v{16+r}, v{20+r}, vcc")
e("v_cvt_pk_bf16_f32 v20, v16, v17"); e("v_cvt_pk_bf16_f32 v21, v18, v19")
e("v_and_b32 v4, 15, v0"); e("v_lshrrev_b32 v5, 4, v0")
e("v_lshlrev_b32 v6, 7, v4"); e("v_lshl_add_u32 v6, v5, 4, v6")
e("s_lshl_b32 s39, s64, 11"); e(f"s_add_u32 s39, s39, {WS_WT}")
e("buffer_load_dwordx4 v[32:35], v6, s[12:15], s39 offen"); e("buffer_load_dwordx4 v[36:39], v6, s[12:15], s39 offen offset:64")
e("v_lshrrev_b32 v3, 5, v0"); e("v_mul_u32_u24 v3, 288, v3"); e("v_add_u32 v3, v3, v2")
e("s_mul_i32 s39, s64, 576"); e("v_add_u32 v3, s39, v3")
e("ds_write_b32 v3, v20"); e("ds_write_b32 v3, v21 offset:144")
e("s_waitcnt lgkmcnt(0)"); e("s_barrier")
e("v_mul_u32_u24 v7, 144, v4"); e("v_lshl_add_u32 v7, v5, 4, v7")
e("ds_read_b128 v[40:43], v7"); e("ds_read_b128 v[44:47], v7 offset:64")
e("s_waitcnt vmcnt(0) lgkmcnt(0)")
e("v_mfma_f32_16x16x32_bf16 v[48:51], v[32:35], v[40:43], 0")
e("v_mfma_f32_16x16x32_bf16 v[48:51], v[36:39], v[44:47], v[48:51]")
e("v_lshlrev_b32 v6, 7, v4"); e("v_lshl_add_u32 v6, v5, 3, v6")
e("s_lshl_b32 s39, s65, 9"); e("s_lshl_b32 s38, s64, 5"); e("s_add_u32 s39, s39, s38")
e("s_nop 7"); e("s_nop 3")
e("v_cvt_pk_bf16_f32 v52, v48, v49"); e("v_cvt_pk_bf16_f32 v53, v50, v51")
e("buffer_store_dwordx2 v[52:53], v6, s[68:71], s39 offen")
lab("km_end"); e("s_endpgm"); kd("k4m_kernel",80,100)

hdr=open('gather_scatter__tensor_product_equiv_mace__graph.s.ref').read().split('\n')
hdr=[l for l in hdr if l.startswith(';') and '@launch' not in l]
L=["; @launch kernel=k2s_kernel grid=(400,1,1) block=(256,1,1) lds=45312",
f"; @launch kernel=k3b_kernel grid=({B},1,1) block=(512,1,1) lds=10240",
"; @launch kernel=k4m_kernel grid=(12500,1,1) block=(256,1,1) lds=2304"]
txt="\n".join(hdr+L)+'\n.amdgcn_target "amdgcn-amd-amdhsa--gfx950"\n.text\n'+"\n".join(out)+'\n.section .rodata,"a"\n'+"\n".join(".p2align 6\n"+k for k in kds)+"\n"
open('gather_scatter__tensor_product_equiv_mace__graph.s','w').write(txt)
```

```python
N=50000; E=800000; B=782
WS_CNT=0x0; WS_CUR=0x1000; WS_BASE=0x2000; WS_NOFF=0x4000
WS_BSRC=0x100000; WS_BF=0x500000; WS_SSRC=0x1200000; WS_SF=0x1600000; WS_AGG=0x2400000
WS_SIZE=268435456; WS_WT=0xF0000; WS_H=0x40000
out=[]
def e(s): out.append("    "+s)
def lab(s): out.append(s+":")
def srd(d, lo, size):
    e(f"s_mov_b32 s{d}, s{lo}"); e(f"s_and_b32 s{d+1}, s{lo+1}, 0xffff"); e(f"s_mov_b32 s{d+2}, {size:#x}"); e(f"s_mov_b32 s{d+3}, 0x00020000")
def kstart(name):
    out.append(f".globl {name}\n.p2align 8\n.type {name},@function\n{name}:")
def scan64(v):
    for sh in (1,2,4,8):
        e("s_nop 1"); e(f"v_add_u32_dpp v{v}, v{v}, v{v} row_shr:{sh} row_mask:0xf bank_mask:0xf bound_ctrl:0")
    e("s_nop 1"); e(f"v_add_u32_dpp v{v}, v{v}, v{v} row_bcast:15 row_mask:0xa bank_mask:0xf")
    e("s_nop 1"); e(f"v_add_u32_dpp v{v}, v{v}, v{v} row_bcast:31 row_mask:0xc bank_mask:0xf")
    e("s_nop 1")
kds=[]
def kd(name, vgpr, sgpr=96):
    kds.append(f""".amdhsa_kernel {name}
  .amdhsa_next_free_vgpr {vgpr}
  .amdhsa_next_free_sgpr {sgpr}
  .amdhsa_accum_offset {(vgpr+3)//4*4}
  .amdhsa_group_segment_fixed_size 0
  .amdhsa_kernarg_size 88
  .amdhsa_user_sgpr_count 2
  .amdhsa_user_sgpr_kernarg_segment_ptr 1
  .amdhsa_system_sgpr_workgroup_id_x 1
.end_amdhsa_kernel""")

B=196
def bscan16(v, t, wsumoff, tot=None):
    e(f"v_mov_b32 v{t}, v{v}"); scan64(t)
    e(f"v_lshrrev_b32 v{t+1}, 6, v0"); e(f"v_lshlrev_b32 v{t+2}, 2, v{t+1}")
    e(f"v_and_b32 v{t+3}, 63, v0"); e(f"v_cmp_eq_u32 vcc, 63, v{t+3}"); e("s_and_saveexec_b64 s[16:17], vcc")
    e(f"ds_write_b32 v{t+2}, v{t} offset:{wsumoff}"); e("s_mov_b64 exec, s[16:17]")
    e("s_waitcnt lgkmcnt(0)"); e("s_barrier")
    e(f"v_mov_b32 v{t+2}, 0")
    for k in range(4): e(f"ds_read_b128 v[{t+4+4*k}:{t+7+4*k}], v{t+2} offset:{wsumoff+16*k}")
    e("s_waitcnt lgkmcnt(0)")
    e(f"v_sub_u32 v{v}, v{t}, v{v}")
    if tot is not None: e(f"v_mov_b32 v{tot}, 0")
    for k in range(NW):
        if tot is not None: e(f"v_add_u32 v{tot}, v{tot}, v{t+4+k}")
        e(f"v_cmp_lt_u32 vcc, {k}, v{t+1}"); e("s_nop 1"); e(f"v_cndmask_b32 v{t+4+k}, 0, v{t+4+k}, vcc"); e(f"v_add_u32 v{v}, v{v}, v{t+4+k}")
    e("s_barrier")

L_H=0; L_CUR=1024; L_WS=3072; L_IDX=4096; L_F=12288
kstart("k2s_kernel")
e("s_cmp_ge_u32 s2, 400"); e("s_cbranch_scc1 k2_end")
e("s_load_dwordx4 s[4:7], s[0:1], 8"); e("s_load_dwordx4 s[20:23], s[0:1], 24"); e("s_load_dwordx2 s[24:25], s[0:1], 80"); e("s_load_dwordx2 s[26:27], s[0:1], 56"); e("s_waitcnt lgkmcnt(0)")
srd(8,4,E*4); srd(12,6,E*4); srd(28,20,E*8); srd(32,22,E*8); srd(36,24,WS_SIZE); srd(44,26,8192)
e("s_cmp_lg_u32 s2, 0"); e("s_cbranch_scc1 k2_notr")
e("v_and_b32 v2, 63, v0"); e("v_lshrrev_b32 v3, 6, v0"); e("v_lshlrev_b32 v8, 11, v3"); e("v_lshl_add_u32 v8, v2, 1, v8")
for i in range(16): e(f"buffer_load_ushort v{16+i}, v8, s[44:47], 0 offen offset:{128*i}")
e("v_lshlrev_b32 v9, 7, v2"); e("v_lshl_add_u32 v9, v3, 5, v9"); e("s_waitcnt vmcnt(0)")
for i in range(8): e(f"v_lshl_or_b32 v{32+i}, v{17+2*i}, 16, v{16+2*i}")
e(f"s_mov_b32 s42, {WS_WT}"); e("buffer_store_dwordx4 v[32:35], v9, s[36:39], s42 offen"); e("buffer_store_dwordx4 v[36:39], v9, s[36:39], s42 offen offset:16")
e("s_waitcnt vmcnt(0)")
lab("k2_notr")
e("v_lshlrev_b32 v1, 2, v0"); e("v_mov_b32 v2, 0"); e(f"ds_write_b32 v1, v2 offset:{L_H}")
e("s_mul_i32 s3, s2, 8000")
e("v_lshlrev_b32 v6, 5, v0"); e("v_add_u32 v6, s3, v6"); e("v_lshlrev_b32 v7, 1, v6")
e("v_cmp_gt_u32 vcc, 250, v0"); e("s_and_saveexec_b64 s[18:19], vcc")
e("buffer_load_dwordx4 v[8:11], v6, s[12:15], 0 offen"); e("buffer_load_dwordx4 v[12:15], v6, s[12:15], 0 offen offset:16")
e("buffer_load_dwordx4 v[16:19], v6, s[8:11], 0 offen"); e("buffer_load_dwordx4 v[20:23], v6, s[8:11], 0 offen offset:16")
for i in range(4): e(f"buffer_load_dwordx4 v[{24+4*i}:{27+4*i}], v7, s[28:31], 0 offen offset:{16*i}")
for i in range(4): e(f"buffer_load_dwordx4 v[{40+4*i}:{43+4*i}], v7, s[32:35], 0 offen offset:{16*i}")
e("s_mov_b64 exec, s[18:19]"); e("s_waitcnt vmcnt(0) lgkmcnt(0)"); e("s_barrier")
e("v_mov_b32 v79, 1")
e("v_cmp_gt_u32 vcc, 250, v0"); e("s_and_saveexec_b64 s[16:17], vcc")
for i in range(8):
    e(f"v_lshrrev_b32 v{68+i}, 8, v{8+i}"); e(f"v_lshlrev_b32 v{68+i}, 2, v{68+i}")
for i in range(8): e(f"ds_add_u32 v{68+i}, v79 offset:{L_H}")
e("s_mov_b64 exec, s[16:17]"); e("s_waitcnt lgkmcnt(0)"); e("s_barrier")
e(f"ds_read_b32 v58, v1 offset:{L_H}"); e("s_waitcnt lgkmcnt(0)")
NW=4
bscan16(58,80,L_WS)
e(f"ds_write_b32 v1, v58 offset:{L_CUR}")
e("s_movk_i32 s42, 1600"); e("v_mul_lo_u32 v59, s42, v0"); e("s_lshl_b32 s42, s2, 2"); e(f"s_add_u32 s42, s42, {WS_H}")
e("buffer_store_dword v58, v59, s[36:39], s42 offen")
e("s_waitcnt lgkmcnt(0)"); e("s_barrier")
e("v_cmp_gt_u32 vcc, 250, v0"); e("s_and_saveexec_b64 s[16:17], vcc")
for i in range(8): e(f"ds_add_rtn_u32 v{68+i}, v{68+i}, v79 offset:{L_CUR}")
e("s_waitcnt lgkmcnt(0)")
for i in range(8):
    e(f"v_lshlrev_b32 v{8+i}, 16, v{8+i}"); e(f"v_or_b32 v{8+i}, v{8+i}, v{16+i}")
    e(f"v_lshlrev_b32 v76, 2, v{68+i}"); e(f"ds_write_b32 v76, v{8+i} offset:{L_IDX}")
    e(f"v_lshlrev_b32 v77, 4, v{68+i}")
    e(f"ds_write_b64 v77, v[{24+2*i}:{25+2*i}] offset:{L_F}"); e(f"ds_write_b64 v77, v[{40+2*i}:{41+2*i}] offset:{L_F+8}")
e("s_mov_b64 exec, s[16:17]"); e("s_waitcnt lgkmcnt(0)"); e("s_barrier")
e(f"s_add_u32 s40, s3, {WS_BSRC}"); e("s_lshl_b32 s41, s3, 2"); e(f"s_add_u32 s41, s41, {WS_BF}")
e("v_lshlrev_b32 v2, 4, v0")
for it in range(8):
    if it==7:
        e("v_cmp_gt_u32 vcc, 208, v0"); e("s_and_saveexec_b64 s[16:17], vcc"); e("s_cbranch_execz k2_end")
    e(f"ds_read_b32 v{8+it}, v1 offset:{L_IDX+1024*it}"); e(f"ds_read_b128 v[{24+4*it}:{27+4*it}], v2 offset:{L_F+4096*it}")
    e("s_waitcnt lgkmcnt(0)")
    e(f"buffer_store_dword v{8+it}, v1, s[36:39], s40 offen offset:{1024*it if it<4 else 0}" if it<4 else f"s_nop 0")
    if it>=4:
        e(f"v_add_u32 v60, {1024*it}, v1"); e(f"buffer_store_dword v{8+it}, v60, s[36:39], s40 offen")
    e(f"v_add_u32 v61, {4096*it}, v2"); e(f"buffer_store_dwordx4 v[{24+4*it}:{27+4*it}], v61, s[36:39], s41 offen")
lab("k2_end"); e("s_endpgm"); kd("k2s_kernel",104)

LB_CUR=4096; LB_WS=5120; LB_RO=6144; LB_TAB=8192
def search4():
    for q in range(4): e(f"v_mov_b32 v{48+q}, 0")
    for st in (256,128,64,32,16,8,4,2,1):
        for q in range(4):
            e(f"v_add_lshl_u32 v{52+q}, v{48+q}, {st}, 2" if st<=64 else f"v_add_u32 v{52+q}, {st}, v{48+q}")
            if st>64: e(f"v_lshlrev_b32 v{52+q}, 2, v{52+q}")
            e(f"ds_read_b32 v{56+q}, v{52+q} offset:{LB_RO}")
        e("s_waitcnt lgkmcnt(0)")
        for q in range(4):
            e(f"v_lshrrev_b32 v{52+q}, 2, v{52+q}"); e(f"v_cmp_le_u32 vcc, v{56+q}, v{44+q}"); e("s_nop 1"); e(f"v_cndmask_b32 v{48+q}, v{48+q}, v{52+q}, vcc")
    for q in range(4):
        e(f"v_lshlrev_b32 v{48+q}, 2, v{48+q}"); e(f"ds_read_b32 v{48+q}, v{48+q} offset:{LB_TAB}")
    e("s_waitcnt lgkmcnt(0)")
    for q in range(4): e(f"v_add_u32 v{48+q}, v{48+q}, v{44+q}")
def clamp4():
    for q in range(4):
        e(f"v_add_u32 v{60+q}, {1024*q}, v4"); e(f"v_min_u32 v{44+q}, s24, v{60+q}")
kstart("k3b_kernel")
e(f"s_cmp_ge_u32 s2, {B}"); e("s_cbranch_scc1 kb_end")
e("s_load_dwordx2 s[4:5], s[0:1], 80"); e("s_waitcnt lgkmcnt(0)")
srd(8,4,WS_SIZE)
e("v_lshlrev_b32 v1, 2, v0"); e("v_mov_b32 v2, 0"); e("ds_write_b32 v1, v2")
e("v_mov_b32 v3, 1"); e("v_mov_b32 v10, 0"); e("v_mov_b32 v11, 0")
e("s_mul_i32 s20, s2, 1600"); e(f"s_add_u32 s20, s20, {WS_H}"); e("s_add_u32 s21, s20, 1600")
e("v_cmp_gt_u32 vcc, 400, v0"); e("s_and_saveexec_b64 s[18:19], vcc"); e("s_cbranch_execz kb_nh")
e("buffer_load_dword v10, v1, s[8:11], s20 offen"); e("buffer_load_dword v11, v1, s[8:11], s21 offen"); e("s_waitcnt vmcnt(0)")
lab("kb_nh"); e("s_mov_b64 exec, s[18:19]")
e("v_sub_u32 v11, v11, v10")
NW=16
e("v_mov_b32 v12, v10"); bscan16(12,20,LB_WS,13)
bscan16(11,20,LB_WS,14)
e("v_mul_u32_u24 v15, 2000, v0"); e("v_add_u32 v15, v15, v10"); e("v_sub_u32 v15, v15, v11")
e("v_cmp_gt_u32 vcc, 400, v0"); e("s_nop 1"); e("v_cndmask_b32 v11, -1, v11, vcc")
e("v_cmp_gt_u32 vcc, 512, v0"); e("s_and_saveexec_b64 s[18:19], vcc")
e(f"ds_write_b32 v1, v11 offset:{LB_RO}"); e(f"ds_write_b32 v1, v15 offset:{LB_TAB}")
e("s_mov_b64 exec, s[18:19]")
e("v_readfirstlane_b32 s12, v13"); e("v_readfirstlane_b32 s13, v14")
e(f"s_mov_b32 s20, {WS_BSRC}"); e("s_waitcnt lgkmcnt(0)"); e("s_barrier")
e("v_mov_b32 v4, v0")
e("s_sub_u32 s24, s13, 1")
lab("kb_l1")
e("v_cmp_gt_u32 vcc, s13, v4"); e("s_and_saveexec_b64 s[16:17], vcc"); e("s_cbranch_execz kb_l1e")
clamp4(); search4()
for q in range(4):
    e(f"v_lshlrev_b32 v{52+q}, 2, v{48+q}"); e(f"buffer_load_dword v{56+q}, v{52+q}, s[8:11], s20 offen")
e("s_waitcnt vmcnt(0)")
for q in range(4):
    e(f"v_bfe_u32 v{56+q}, v{56+q}, 16, 8"); e(f"v_lshlrev_b32 v{56+q}, 2, v{56+q}")
    e(f"v_cmp_gt_u32 vcc, s13, v{60+q}"); e("s_and_saveexec_b64 s[14:15], vcc"); e(f"ds_add_u32 v{56+q}, v3"); e("s_mov_b64 exec, s[14:15]")
e("v_add_u32 v4, 4096, v4"); e("s_branch kb_l1")
lab("kb_l1e"); e("s_mov_b64 exec, -1"); e("s_waitcnt lgkmcnt(0)"); e("s_barrier")
e("ds_read_b32 v8, v1"); e("s_waitcnt lgkmcnt(0)"); bscan16(8,20,LB_WS)
e("v_add_u32 v8, s12, v8"); e("v_cmp_gt_u32 vcc, 256, v0"); e("s_and_saveexec_b64 s[16:17], vcc"); e("s_cbranch_execz kb_sk"); e(f"ds_write_b32 v1, v8 offset:{LB_CUR}")
e("s_lshl_b32 s21, s2, 8"); e("v_add_u32 v9, s21, v0"); e(f"v_cmp_ge_u32 vcc, {N}, v9"); e("s_and_b64 exec, exec, vcc")
e("s_cbranch_execz kb_sk")
e("v_lshlrev_b32 v9, 2, v9"); e(f"s_mov_b32 s20, {WS_NOFF}"); e("buffer_store_dword v8, v9, s[8:11], s20 offen")
lab("kb_sk"); e("s_mov_b64 exec, -1"); e("s_waitcnt lgkmcnt(0)"); e("s_barrier")
e("v_mov_b32 v4, v0")
e(f"s_mov_b32 s20, {WS_BSRC}"); e(f"s_mov_b32 s21, {WS_BF}"); e(f"s_mov_b32 s22, {WS_SSRC}"); e(f"s_mov_b32 s23, {WS_SF}")
lab("kb_l2")
e("v_cmp_gt_u32 vcc, s13, v4"); e("s_and_saveexec_b64 s[16:17], vcc"); e("s_cbranch_execz kb_end")
clamp4(); search4()
for q in range(4):
    e(f"v_lshlrev_b32 v{52+q}, 2, v{48+q}"); e(f"v_lshlrev_b32 v{48+q}, 4, v{48+q}")
    e(f"buffer_load_dword v{56+q}, v{52+q}, s[8:11], s20 offen"); e(f"buffer_load_dwordx4 v[{64+4*q}:{67+4*q}], v{48+q}, s[8:11], s21 offen")
e("s_waitcnt vmcnt(0)")
for q in range(4):
    e(f"v_bfe_u32 v{52+q}, v{56+q}, 16, 8"); e(f"v_lshlrev_b32 v{52+q}, 2, v{52+q}"); e(f"v_and_b32 v{56+q}, 0xffff, v{56+q}")
    e(f"v_cmp_gt_u32 vcc, s13, v{60+q}"); e("s_and_saveexec_b64 s[14:15], vcc"); e(f"s_cbranch_execz kb_s{q}")
    e(f"ds_add_rtn_u32 v{52+q}, v{52+q}, v3 offset:{LB_CUR}"); e("s_waitcnt lgkmcnt(0)")
    e(f"v_lshlrev_b32 v{48+q}, 4, v{52+q}"); e(f"v_lshlrev_b32 v{52+q}, 2, v{52+q}")
    e(f"buffer_store_dword v{56+q}, v{52+q}, s[8:11], s22 offen"); e(f"buffer_store_dwordx4 v[{64+4*q}:{67+4*q}], v{48+q}, s[8:11], s23 offen")
    lab(f"kb_s{q}"); e("s_mov_b64 exec, s[14:15]")
e("v_add_u32 v4, 4096, v4"); e("s_branch kb_l2")
lab("kb_end"); e("s_endpgm"); kd("k3b_kernel",80)

D=8
def pk(op,d,s0,s1,s2=None,sel0=None):
    ops=f"v[{d}:{d+1}], {s0}, v[{s1}:{s1+1}]"+(f", v[{s2}:{s2+1}]" if s2 is not None else "")
    n=3 if s2 is not None else 2
    if sel0 is None: e(f"{op} {ops}")
    else:
        lo=[sel0]+[0]*(n-1); hi=[sel0]+[1]*(n-1)
        e(f"{op} {ops} op_sel:[{','.join(map(str,lo))}] op_sel_hi:[{','.join(map(str,hi))}]")
kstart("k4m_kernel")
e("v_lshrrev_b32 v1, 6, v0"); e("s_nop 0"); e("v_readfirstlane_b32 s3, v1")
e("s_lshl_b32 s2, s2, 2"); e("s_mov_b32 s65, s2"); e("s_mov_b32 s64, s3"); e("s_add_u32 s2, s2, s3")
e(f"s_cmp_ge_u32 s2, {N}"); e("s_cbranch_scc1 km_end")
e("s_load_dwordx2 s[66:67], s[0:1], 64"); e("s_load_dwordx2 s[4:5], s[0:1], 0"); e("s_load_dwordx4 s[20:23], s[0:1], 40"); e("s_load_dwordx2 s[6:7], s[0:1], 80"); e("s_waitcnt lgkmcnt(0)")
srd(8,4,N*512); srd(12,6,WS_SIZE); srd(24,20,128); srd(28,22,512); srd(68,66,N*512)
e("s_lshl_b32 s3, s2, 2"); e(f"s_add_u32 s3, s3, {WS_NOFF}"); e("s_add_u32 s16, s6, s3"); e("s_addc_u32 s17, s7, 0")
e("s_load_dwordx2 s[18:19], s[16:17], 0")
e("v_and_b32 v0, 63, v0")
e("v_lshlrev_b32 v1, 2, v0")
e("v_and_b32 v2, 31, v0"); e("v_lshlrev_b32 v2, 2, v2")
for d in range(4): e(f"buffer_load_dword v{32+d}, v2, s[28:31], 0 offen offset:{128*d}")
e("v_lshrrev_b32 v3, 5, v0"); e("v_lshlrev_b32 v3, 5, v3")
for q in range(4): e(f"buffer_load_dwordx4 v[{(8,12,64,68)[q]}:{(11,15,67,71)[q]}], v3, s[24:27], 0 offen offset:{(q&1)*16+(q>>1)*64}")
e("s_waitcnt vmcnt(4)")
for d in range(4):
    e(f"v_lshlrev_b32 v{16+2*d}, 16, v{32+d}"); e(f"v_and_b32 v{17+2*d}, 0xffff0000, v{32+d}")
for i in range(16): e(f"v_mov_b32 v{32+i}, 0")
e("s_waitcnt lgkmcnt(0)")
e(f"s_mov_b32 s32, {WS_SSRC}"); e(f"s_mov_b32 s33, {WS_SF}")
e("s_mov_b32 s34, s18")
lab("km_batch")
e("s_sub_u32 s35, s19, s34"); e("s_cmp_eq_u32 s35, 0"); e("s_cbranch_scc1 km_done")
e("s_lshl_b32 s39, s34, 4"); e(f"s_add_u32 s39, s39, {WS_SF}"); e("s_add_u32 s16, s12, s39"); e("s_addc_u32 s17, s13, 0")
e("s_lshl_b32 s39, s34, 2"); e(f"s_add_u32 s39, s39, {WS_SSRC}"); e("s_add_u32 s96, s12, s39"); e("s_addc_u32 s97, s13, 0")
e("s_load_dwordx8 s[24:31], s[96:97], 0"); e("s_load_dwordx16 s[72:87], s[16:17], 0")
e("s_waitcnt lgkmcnt(0)")
for i in range(D):
    e(f"s_lshl_b32 s{40+i}, s{24+i}, 9"); e(f"s_cmp_le_u32 s35, {i}"); e(f"s_cselect_b32 s{40+i}, 0x7f000000, s{40+i}")
e("s_load_dwordx8 s[24:31], s[96:97], 32")
for i in range(D):
    e(f"buffer_load_dword v{48+2*i}, v1, s[8:11], s{40+i} offen"); e(f"buffer_load_dword v{49+2*i}, v1, s[8:11], s{40+i} offen offset:256")
e("s_mov_b32 s38, 0")
lab("km_loop")
for i in range(D):
    if i==0:
        e("s_waitcnt lgkmcnt(0)")
        for j in range(D):
            e(f"s_lshl_b32 s{88+j}, s{24+j}, 9"); e(f"s_add_u32 s39, s38, {j+D}"); e("s_cmp_ge_u32 s39, s35"); e(f"s_cselect_b32 s{88+j}, 0x7f000000, s{88+j}")
        e("s_load_dwordx8 s[24:31], s[96:97], 64"); e("s_load_dwordx16 s[48:63], s[16:17], 64")
    if i==4: e("s_waitcnt lgkmcnt(0)"); e("s_load_dwordx16 s[72:87], s[16:17], 128")
    fb=(72 if i<4 else 48)+4*(i&3)
    for q in range(4):
        dd=(20,22,4,6)[q]
        e(f"s_lshl_b32 s{dd}, s{fb+q}, 16"); e(f"s_and_b32 s{dd+1}, s{fb+q}, 0xffff0000")
    e(f"s_waitcnt vmcnt({2*(D-1)})")
    b=48+2*i
    e(f"v_lshlrev_b32 v24, 16, v{b}"); e(f"v_and_b32 v25, 0xffff0000, v{b}"); e(f"v_lshlrev_b32 v26, 16, v{b+1}"); e(f"v_and_b32 v27, 0xffff0000, v{b+1}")
    e(f"buffer_load_dword v{b}, v1, s[8:11], s{88+i} offen"); e(f"buffer_load_dword v{b+1}, v1, s[8:11], s{88+i} offen offset:256")
    pk("v_pk_mul_f32",28,"s[4:5]",16,None,0)
    pk("v_pk_fma_f32",28,"s[4:5]",18,28,1)
    pk("v_pk_fma_f32",28,"s[6:7]",20,28,0)
    pk("v_pk_fma_f32",28,"s[6:7]",22,28,1)
    pk("v_pk_mul_f32",24,"v[28:29]",24)
    pk("v_pk_mul_f32",26,"v[28:29]",26)
    for v in range(4):
        for ui in range(2):
            pk("v_pk_fma_f32",32+8*ui+2*v,f"s[{20+(v&2)}:{21+(v&2)}]",24+2*ui,32+8*ui+2*v,v&1)
    if i<D-1:
        e(f"s_add_u32 s39, s38, {i+1}"); e("s_cmp_ge_u32 s39, s35"); e("s_cbranch_scc1 km_bend")
e("s_add_u32 s16, s16, 128"); e("s_addc_u32 s17, s17, 0"); e("s_add_u32 s96, s96, 32"); e("s_addc_u32 s97, s97, 0")
e(f"s_add_u32 s38, s38, {D}"); e("s_cmp_lt_u32 s38, s35"); e("s_cbranch_scc1 km_loop")
lab("km_bend")
e("s_waitcnt vmcnt(0) lgkmcnt(0)")
lab("km_done")
e("s_waitcnt vmcnt(0)")
first=True
for ui in range(2):
    for v in range(4):
        for wp in range(2):
            src=(8,64)[ui]+2*v+wp
            e(f"v_lshlrev_b32 v{48+2*wp}, 16, v{src}"); e(f"v_and_b32 v{49+2*wp}, 0xffff0000, v{src}")
        for w in range(4):
            t=32+8*ui+2*v
            if first: pk("v_pk_mul_f32",16+2*w,f"v[{48+(w&2)}:{49+(w&2)}]",t,None,w&1)
            else: pk("v_pk_fma_f32",16+2*w,f"v[{48+(w&2)}:{49+(w&2)}]",t,16+2*w,w&1)
        first=False
for r in range(8): e(f"v_mov_b32 v{24+r}, v{16+r}")
e("s_nop 1")
for r in range(8): e(f"v_permlane32_swap_b32 v{16+r}, v{24+r}")
for r in range(8): e(f"v_add_f32 v{16+r}, v{16+r}, v{24+r}")
e("v_cmp_le_u32 vcc, 32, v0"); e("s_nop 1")
for r in range(4): e(f"v_cndmask_b32 v{16+r}, v{16+r}, v{20+r}, vcc")
e("v_cvt_pk_bf16_f32 v20, v16, v17"); e("v_cvt_pk_bf16_f32 v21, v18, v19")
e("v_and_b32 v4, 15, v0"); e("v_lshrrev_b32 v5, 4, v0")
e("v_lshlrev_b32 v6, 7, v4"); e("v_lshl_add_u32 v6, v5, 4, v6")
e("s_lshl_b32 s39, s64, 11"); e(f"s_add_u32 s39, s39, {WS_WT}")
e("buffer_load_dwordx4 v[32:35], v6, s[12:15], s39 offen"); e("buffer_load_dwordx4 v[36:39], v6, s[12:15], s39 offen offset:64")
e("v_lshrrev_b32 v3, 5, v0"); e("v_mul_u32_u24 v3, 288, v3"); e("v_add_u32 v3, v3, v2")
e("s_mul_i32 s39, s64, 576"); e("v_add_u32 v3, s39, v3")
e("ds_write_b32 v3, v20"); e("ds_write_b32 v3, v21 offset:144")
e("s_waitcnt lgkmcnt(0)"); e("s_barrier")
e("v_mul_u32_u24 v7, 144, v4"); e("v_lshl_add_u32 v7, v5, 4, v7")
e("ds_read_b128 v[40:43], v7"); e("ds_read_b128 v[44:47], v7 offset:64")
e("s_waitcnt vmcnt(0) lgkmcnt(0)")
e("v_mfma_f32_16x16x32_bf16 v[48:51], v[32:35], v[40:43], 0")
e("v_mfma_f32_16x16x32_bf16 v[48:51], v[36:39], v[44:47], v[48:51]")
e("v_lshlrev_b32 v6, 7, v4"); e("v_lshl_add_u32 v6, v5, 3, v6")
e("s_lshl_b32 s39, s65, 9"); e("s_lshl_b32 s38, s64, 5"); e("s_add_u32 s39, s39, s38")
e("s_nop 7"); e("s_nop 3")
e("v_cvt_pk_bf16_f32 v52, v48, v49"); e("v_cvt_pk_bf16_f32 v53, v50, v51")
e("buffer_store_dwordx2 v[52:53], v6, s[68:71], s39 offen")
lab("km_end"); e("s_endpgm"); kd("k4m_kernel",72,100)

hdr=open('gather_scatter__tensor_product_equiv_mace__graph.s.ref').read().split('\n')
hdr=[l for l in hdr if l.startswith(';') and '@launch' not in l]
L=["; @launch kernel=k2s_kernel grid=(400,1,1) block=(256,1,1) lds=44288",
f"; @launch kernel=k3b_kernel grid=({B},1,1) block=(1024,1,1) lds=10240",
"; @launch kernel=k4m_kernel grid=(12500,1,1) block=(256,1,1) lds=2304"]
txt="\n".join(hdr+L)+'\n.amdgcn_target "amdgcn-amd-amdhsa--gfx950"\n.text\n'+"\n".join(out)+'\n.section .rodata,"a"\n'+"\n".join(".p2align 6\n"+k for k in kds)+"\n"
open('gather_scatter__tensor_product_equiv_mace__graph.s','w').write(txt)
```
